```python
import torch

def _softmax(x, axis=-1):
    return torch.softmax(x, dim=axis)
def _gelu(x):
    return torch.nn.functional.gelu(x, approximate="tanh")
def _silu(x):
    return torch.nn.functional.silu(x)
def _sigmoid(x):
    return torch.sigmoid(x)
def _layernorm(x, axis=-1, eps=1e-5):
    m = x.mean(dim=axis, keepdim=True)
    v = x.var(dim=axis, keepdim=True, unbiased=False)
    return (x - m) / torch.sqrt(v + eps)
def _scatter_add(tgt, idx, src, axis=0):
    return tgt.clone().index_add_(axis, idx, src)
def _segment_sum(src, seg, n):
    out = torch.zeros((n,) + src.shape[1:], dtype=src.dtype)
    return out.index_add_(0, seg, src)
def _pad(x, pw):
    flat = tuple(v for pair in reversed(pw) for v in pair)
    return torch.nn.functional.pad(x, flat)

kernel_name = 'parallel_sum__spectral_gfnet__dense_activation_gelu__prompt'

def setup_inputs():

    _w = (lambda a: (lambda t: t.to(torch.bfloat16) if t.is_floating_point() else t)(torch.as_tensor(a)))
    def _A_setup():
        B, S, D = 1, 2048, 448
        Df = D // 2 + 1
        return {
            "x": _w((lambda *s: torch.randn(*s, dtype=torch.bfloat16) * 0.05)(B, S, D)),
            "w_r": _w((lambda *s: torch.randn(*s, dtype=torch.bfloat16) * 0.8)(S, Df) * 0.02),
            "w_i": _w((lambda *s: torch.randn(*s, dtype=torch.bfloat16) * 0.8)(S, Df) * 0.02),
        }
    _A_in = _A_setup()

    def _B_setup():
        B, S, D, F = 1, 2048, 448, 1792
        return {
            "x": _w((lambda *s: torch.randn(*s, dtype=torch.bfloat16) * 0.05)(B, S, D)),
            "w1": _w((lambda *s: torch.randn(*s, dtype=torch.bfloat16) * 0.4)(D, F) * (D ** -0.5)),
            "b1": _w((lambda *s: torch.randn(*s, dtype=torch.bfloat16) * 12.8)(F) * 0.01),
            "w2": _w((lambda *s: torch.randn(*s, dtype=torch.bfloat16) * 0.2)(F, D) * (F ** -0.5)),
            "b2": _w((lambda *s: torch.randn(*s, dtype=torch.bfloat16) * 1.6)(D) * 0.01),
        }
    _B_in = _B_setup()

    return {
        "A_x": _A_in["x"],
        "A_w_r": _A_in["w_r"],
        "A_w_i": _A_in["w_i"],
        "B_x": _B_in["x"],
        "B_w1": _B_in["w1"],
        "B_b1": _B_in["b1"],
        "B_w2": _B_in["w2"],
        "B_b2": _B_in["b2"],
    }

def reference(A_x, A_w_r, A_w_i, B_x, B_w1, B_b1, B_w2, B_b2):
    def _A_ref(x, w_r, w_i):
        B, S, D = x.shape
        X = (lambda x, axes=(-2,-1): torch.fft.rfft2(x.float(), dim=axes))(x, axes=(-2, -1))
        W = w_r + 1j * w_i
        X = X * W
        y = (lambda x, s, axes=(-2,-1): torch.fft.irfft2(x, s=s, dim=axes).to(torch.bfloat16))(X, (S, D), axes=(-2, -1))
        return y

    def _B_ref(x, w1, b1, w2, b2):
        h = torch.einsum("bsd,df->bsf", x, w1) + b1
        h = _gelu(h)
        return torch.einsum("bsf,fd->bsd", h, w2) + b2

    x = A_x
    xn = _layernorm(x, axis=-1)
    return x + _A_ref(xn, A_w_r, A_w_i) + _B_ref(xn, B_w1, B_b1, B_w2, B_b2)
```

```python
import struct, math
NAME = "parallel_sum__spectral_gfnet__dense_activation_gelu__prompt"
WS_H, WS_W2P, WS_X1, WS_U = 0x0, 0x700000, 0x900000, 0xB00000
WS_F = 0xD00000
WS_SIZE = 0xD40000
def f2u(x): return struct.unpack("<I", struct.pack("<f", x))[0]
def fhex(x): return "0x%08x" % f2u(x)
import os
STAMP = int(os.environ.get("STAMP", "0"))
STAMP_PART = int(os.environ.get("SP", "3"))
class Asm:
    on = True
    def __init__(self): self.L = []; self.nlab = 0
    def stamp(self, i):
        if STAMP and (self.on or i in (0, 7)): self(("s_memtime" if STAMP == 2 else "s_memrealtime") + f" s[{70+2*i}:{71+2*i}]\ns_waitcnt lgkmcnt(0)")
    def stamp_flush(self, k, wave):
        if not STAMP: return
        self(f"s_waitcnt vmcnt(0)")
        self.stamp(7)
        self(f"s_load_dwordx2 s[92:93], s[0:1], 80\ns_lshl_b32 s90, s2, 3\ns_add_u32 s90, s90, s{wave}\ns_lshl_b32 s90, s90, 5\ns_add_u32 s90, s90, {0xE00000+k*0x40000}\ns_mov_b32 s94, 0x1000000\ns_mov_b32 s95, 0x20000\ns_waitcnt lgkmcnt(0)\ns_mov_b64 exec, 1")
        for i in range(8): self(f"v_mov_b32 v{i}, s{70+2*i}")
        self("buffer_store_dwordx4 v[0:3], off, s[92:95], s90\nbuffer_store_dwordx4 v[4:7], off, s[92:95], s90 offset:16")
    def __call__(self, s):
        for l in s.split("\n"):
            l = l.strip()
            if l: self.L.append(l)
    def label(self, p="L"):
        self.nlab += 1
        return f"{p}_{self.nlab}"
    def srd(self, d, lo, nbytes, add=0):
        if add:
            self(f"s_add_u32 s{d}, s{lo}, {add:#x}\ns_addc_u32 s{d+1}, s{lo+1}, 0")
        else:
            self(f"s_mov_b32 s{d}, s{lo}\ns_mov_b32 s{d+1}, s{lo+1}")
        self(f"s_mov_b32 s{d+2}, {nbytes:#x}\ns_mov_b32 s{d+3}, 0x20000")
def vr(a, n): return f"v[{a}:{a+n-1}]"
def kernel_begin(A, name):
    A.L.append(f".globl {name}\n.p2align 8\n.type {name},@function\n{name}:")
    pad = os.environ.get("PAD", "")
    if pad and pad.split(":")[0] in name:
        A(f"s_memrealtime s[4:5]\ns_waitcnt lgkmcnt(0)\ns_add_u32 s6, s4, {int(pad.split(':')[1])}\nPADL_{name}:\ns_memrealtime s[4:5]\ns_waitcnt lgkmcnt(0)\ns_sub_u32 s7, s6, s4\ns_cmp_gt_i32 s7, 0\ns_cbranch_scc1 PADL_{name}")
def kdesc(name, vgpr, sgpr=96):
    acc = (vgpr + 3) // 4 * 4
    return f""".p2align 6
.amdhsa_kernel {name}
  .amdhsa_next_free_vgpr {vgpr}
  .amdhsa_next_free_sgpr {sgpr}
  .amdhsa_accum_offset {acc}
  .amdhsa_group_segment_fixed_size 0
  .amdhsa_kernarg_size 88
  .amdhsa_user_sgpr_count 2
  .amdhsa_user_sgpr_kernarg_segment_ptr 1
  .amdhsa_system_sgpr_workgroup_id_x 1
.end_amdhsa_kernel"""
```

```python
from common import *
X = os.environ.get('X', 'pa')
PRE = int(os.environ.get('PRE', '4'))
HST = '' if 'S' in X else ' sc1'
from k23 import *
M4 = 'v_mfma_f32_4x4x4_16b_bf16'
SLOT = 24576
L_T1 = 5 * SLOT
L_CST = L_T1 + 28672
L_ST = L_CST + 2048
L_CSW = L_ST + 2048
L_RR = L_CSW + 4096
L_XT = 4 * SLOT + 8192
L_CNT = L_RR + 512
K1_LDS = L_CNT + 64
SE = int(os.environ.get('SE', '2'))
SK = int(os.environ.get('SK', '3'))
HA = int(os.environ.get('HA', '0'))
GC = int(os.environ.get('GC', '30'))
ZH = int(os.environ.get('ZH', '0'))
WK = [int(v) for v in os.environ.get('WK', '0,5').split(',')]
NT = int(os.environ.get('NT', '4'))
NB = int(os.environ.get('NB', '18'))
XS = int(os.environ.get('XS', '18'))
XK = int(os.environ.get('XK', '8'))
XF = 128; ACC0 = 96; ACCD = 112; ACC1 = 80; WF = 64; TF = 48
C0 = -2.0 * math.log2(math.e) * math.sqrt(2.0 / math.pi)
C1 = C0 * 0.044715
SCALE = 2.0 / (2048.0 * 448.0)

def gelu_ops(acc, soff_s, vc0, vc1, vsd, vst, T):
    L = []
    for half in range(2):
        a = acc + half * 8
        L += [f"v_mul_f32 v{T+j}, v{a+j}, v{a+j}" for j in range(8)]
        L += [f"v_fma_f32 v{T+j}, v{T+j}, v{vc1}, v{vc0}" for j in range(8)]
        L += [f"v_mul_f32 v{T+j}, v{a+j}, v{T+j}" for j in range(8)]
        L += [f"v_exp_f32 v{T+j}, v{T+j}" for j in range(8)]
        L += [f"v_fma_f32 v{T+j}, v{T+j}, v{vsd}, v{vsd}" for j in range(8)]
        L += [f"v_rcp_f32 v{T+j}, v{T+j}" for j in range(8)]
        L += [f"v_mul_f32 v{T+j}, v{a+j}, v{T+j}" for j in range(8)]
        P = T + 8 + half * 4
        L += [f"v_cvt_pk_bf16_f32 v{P+j}, v{T+2*j}, v{T+2*j+1}" for j in range(4)]
        L += [f"buffer_store_dwordx4 {vr(P,4)}, v{vst}, s[20:23], s{soff_s} offen offset:{half*1024}{HST}"]
    return L
def gelu_store(A, *a):
    for l in gelu_ops(*a): A(l)

def split_hilo(A, dst, src, t0, t1):
    A(f"v_cvt_pk_bf16_f32 v{t0}, v{src}, v{src}")
    A(f"v_and_b32 v{t0}, 0xffff0000, v{t0}")
    A(f"v_sub_f32 v{t1}, v{src}, v{t0}")
    A(f"v_cvt_pk_bf16_f32 v{dst}, v{t0}, v{t1}")

def gen_k1(A, name):
    kernel_begin(A, name)
    Lend = A.label("K1END"); Lspare = A.label("K1SPARE")
    MF = "v_mfma_f32_32x32x16_bf16"
    if '2' in X: A("s_mov_b32 s88, 0\nK1AGAIN:")
    A.stamp(0)
    A.on = STAMP_PART == 1
    A(f"""
    s_cmp_ge_u32 s2, 256
    s_cbranch_scc1 {Lend}
    s_load_dwordx2 s[4:5], s[0:1], 0
    s_load_dwordx4 s[8:11], s[0:1], 32
    s_load_dwordx2 s[6:7], s[0:1], 48
    s_load_dwordx4 s[28:31], s[0:1], 72
    s_load_dwordx4 s[88:91], s[0:1], 8
    v_lshrrev_b32 v1, 6, v0
    v_and_b32 v0, 63, v0
    s_and_b32 s42, s2, 7
    s_lshr_b32 s43, s2, 3
    v_readfirstlane_b32 s32, v1
    s_mov_b32 s59, 200000
    s_cmp_ge_u32 s43, 28
    s_cbranch_scc1 {Lend if 'w' in X else Lspare}
    s_mul_i32 s33, s43, 37
    s_lshr_b32 s33, s33, 8
    s_mul_i32 s35, s33, 7
    s_sub_u32 s35, s43, s35
    s_lshl_b32 s50, s33, 1
    s_add_u32 s50, s50, s35
    s_sub_u32 s38, s50, 7
    s_cselect_b32 s50, s50, s38
    s_lshr_b32 s34, s42, 1
    s_lshl_b32 s34, s34, 2
    s_add_u32 s34, s34, s33
    s_and_b32 s38, s42, 1
    s_mul_i32 s38, s38, 7
    s_add_u32 s35, s35, s38
    s_and_b32 s36, s32, 3
    s_lshr_b32 s37, s32, 2
    s_mov_b32 s51, s50
    """)
    if 'o' in X: A("s_mov_b32 s50, 0\ns_mov_b32 s51, 0")
    for c in range(7):
        A(f"s_lshl_b32 s{52+c}, s51, 7\ns_mul_i32 s{60+c}, s51, {64*3584}")
        if c < 6: A("s_add_u32 s51, s51, 1\ns_cmp_eq_u32 s51, 7\ns_cselect_b32 s51, 0, s51")
    A(f"""
    v_lshrrev_b32 v4, 3, v0
    s_and_b32 s38, s32, 1
    s_lshl_b32 s38, s38, 4
    v_add_u32 v4, s38, v4
    v_lshrrev_b32 v5, 1, v4
    v_and_b32 v5, {4 if 'n' in X else 7}, v5
    v_and_b32 v6, 7, v0
    v_xor_b32 v5, v5, v6
    v_lshlrev_b32 v5, 4, v5
    v_mul_u32_u24 v4, {896 if 'x' in X else 57344}, v4
    s_lshr_b32 s38, s32, 1
    s_lshl_b32 s39, s34, 2
    s_add_u32 s38, s38, s39
    s_mul_i32 s38, s38, {896*32 if 'x' in X else 896}
    v_add_u32 v4, s38, v4
    v_add_u32 v2, v4, v5
    v_xor_b32 v5, 64, v5
    v_add_u32 v3, v4, v5
    v_add_u32 v3, {896*8 if 'x' in X else 458752}, v3
    v_lshrrev_b32 v4, 3, v0
    v_and_b32 v5, 2, v4
    v_lshlrev_b32 v5, 1, v5
    v_xor_b32 v5, v5, v6
    v_lshlrev_b32 v5, 4, v5
    s_lshl_b32 s38, s32, 3
    v_add_u32 v4, s38, v4
    v_mul_u32_u24 v4, 3584, v4
    s_lshl_b32 s38, s35, 8
    v_add3_u32 v4, v4, v5, s38
    s_lshl_b32 s40, s32, 11
    s_lshl_b32 s41, s32, 10
    v_and_b32 v5, 31, v0
    s_lshl_b32 s38, s35, 7
    s_lshl_b32 s39, s37, 5
    s_add_u32 s38, s38, s39
    v_add_lshl_u32 v7, v5, s38, 1
    """)
    A(f"""
    v_lshrrev_b32 v6, 5, v0
    v_and_b32 v10, 15, v0
    s_lshl_b32 s38, s35, 4
    v_add_u32 v10, s38, v10
    v_bfe_u32 v11, v0, 4, 1
    v_cvt_f32_u32 v12, v11
    v_mul_f32 v12, 0.25, v12
    v_add_u32 v13, s38, v5
    v_cmp_eq_u32 vcc, 16, v13
    s_cmp_eq_u32 s35, 0
    s_cselect_b64 vcc, vcc, 0
    v_mov_b32 v14, 224
    v_cndmask_b32 v10, v10, v14, vcc
    v_cndmask_b32 v12, v12, 0, vcc
    v_cvt_f32_u32 v10, v10
    v_mul_f32 v10, {fhex(1.0/448.0)}, v10
    v_lshlrev_b32 v13, 3, v6
    s_lshl_b32 s38, s36, 4
    v_add_u32 v13, s38, v13
    v_cvt_f32_u32 v13, v13
    v_fma_f32 v13, v13, v10, v12
    v_lshlrev_b32 v29, 4, v0
    v_add_u32 v35, {L_T1}, v29
    v_add_u32 v14, s41, v35
    s_waitcnt lgkmcnt(0)
    """)
    A.srd(12, 4, 1835008)
    A.srd(16, 8, 1605632)
    def dma1(c, slot, q):
        if q == 0: A(f"s_add_u32 m0, s40, {slot*SLOT}\ns_nop 0\nbuffer_load_dwordx4 v2, s[12:15], s{52+c} offen lds")
        if q == 1: A(f"s_add_u32 m0, s40, {slot*SLOT+1024}\ns_nop 0\nbuffer_load_dwordx4 v3, s[12:15], s{52+c} offen lds")
        if q == 2: A(f"s_add_u32 m0, s41, {slot*SLOT+16384}\ns_nop 0\nbuffer_load_dwordx4 v4, s[16:19], s{60+c} offen lds")
    def dma_G(c, slot):
        for q in range(3): dma1(c, slot, q)
    baddr = [2*SLOT, 2*SLOT+8192, 2*SLOT+16384, 3*SLOT, 3*SLOT+8192, 3*SLOT+16384, 4*SLOT]
    def dma_B(c):
        A(f"s_add_u32 m0, s41, {baddr[c]-128}\ns_nop 0\nbuffer_load_dwordx4 v4, s[16:19], s{60+c} offen offset:128 lds")
    def t1gen(i):
        A(f"s_add_u32 s38, s50, s37\ns_add_u32 s38, s38, {2*i}\ns_sub_u32 s39, s38, 7\ns_cselect_b32 s38, s38, s39\ns_lshl_b32 s38, s38, 6\nv_cvt_f32_u32 v27, s38\nv_fma_f32 v27, v27, v10, v13")
        for j in range(8): A(f"v_fmamk_f32 v{16+j}, v10, {fhex(float(j))}, v27")
        for j in range(8): A(f"v_cos_f32 v{16+j}, v{16+j}")
        A("s_nop 0")
        for j in range(4): A(f"v_cvt_pk_bf16_f32 v{24+j}, v{16+2*j}, v{17+2*j}")
        A(f"ds_write_b128 v14, v[24:27] offset:{8192*i}")
    dma_G(0, 0); dma_G(1, 1)
    A.srd(24, 10, 3584)
    t1gen(0); dma_G(2, 2)
    A("buffer_load_ushort v8, v7, s[24:27], 0 offen\nbuffer_load_ushort v9, v7, s[24:27], 0 offen offset:128")
    if 'p' not in X:
        A(f"""
        s_mul_i32 s38, s33, 112
        s_mul_i32 s39, s32, 14
        s_add_u32 s38, s38, s39
        v_min_u32 v15, 13, v0
        v_add_u32 v15, s38, v15
        v_mul_u32_u24 v15, 3584, v15
        s_lshl_b32 s38, s35, 8
        buffer_load_dword v1, v15, s[16:19], s38 offen offset:128
        """)
    t1gen(1)
    for c in range(3, PRE): dma_G(c, c)
    A.srd(20, 30, WS_SIZE)
    A(f"""
    s_lshl_b32 s38, s34, 2
    s_add_u32 s44, s38, s36
    s_mul_i32 s38, s44, 112
    s_lshl_b32 s39, s35, 3
    s_add_u32 s38, s38, s39
    s_lshl_b32 s39, s37, 1
    s_add_u32 s38, s38, s39
    s_lshl_b32 s45, s38, 10
    s_add_u32 s46, s45, 4096
    """)
    def preS(q, d): A(f"buffer_store_dwordx4 {vr(d,4)}, v29, s[20:23], s{45+q//2} offen offset:{q%2*1024} sc1")
    def preU(d):
        A(f"s_lshl_b32 s38, s35, 3\ns_add_u32 s38, s38, s32\ns_mul_i32 s39, s38, 147\ns_lshr_b32 s39, s39, 12\ns_lshl_b32 s39, s39, 2\ns_add_u32 s38, s38, s39\ns_lshl_b32 s39, s34, 7\ns_add_u32 s38, s38, s39\ns_lshl_b32 s38, s38, 10\ns_add_u32 s38, s38, {WS_U}")
        A(f"buffer_store_dwordx4 {vr(d,4)}, v29, s[20:23], s38 offen sc1")
    if SE == 1:
        for q in range(4): A(f"v_mov_b32 v{XF+108+q}, -1")
        for q in range(HA): preS(q, XF+108)
        preU(XF+108)
    if 'f' not in X:
        A(f"s_mul_i32 s38, s34, 14\ns_add_u32 s38, s38, s35\ns_cmp_lt_u32 s32, 4\ns_cbranch_scc1 PFD\ns_cmp_eq_u32 s32, 7\ns_cbranch_scc1 PFD")
        A(f"s_cmp_eq_u32 s32, 6\ns_cbranch_scc1 PF6\ns_mul_i32 s38, s38, {33*128}\nv_min_u32 v15, 32, v0\ns_cmp_eq_u32 s32, 5\ns_cbranch_scc1 PF5")
        A.srd(20, 88, 921600); A("s_branch PFG\nPF5:"); A.srd(20, 90, 921600)
        A(f"s_branch PFG\nPF6:\ns_mul_i32 s38, s38, {56*128}\nv_min_u32 v15, 55, v0"); A.srd(20, 6, 1605632)
        A("PFG:\nv_lshlrev_b32 v15, 7, v15\nbuffer_load_dword v47, v15, s[20:23], s38 offen\ns_branch PFE\nPFD:\nbuffer_load_ushort v47, v7, s[24:27], 0 offen\nPFE:")
    t1gen(2)
    A.srd(20, 30, WS_SIZE)
    A.srd(24, 28, 256)
    A(f"v_mov_b32 v11, {L_CNT}\nv_mov_b32 v12, 0\nv_mov_b32 v15, 0\nds_write2_b32 v11, v12, v15 offset0:0 offset1:1\nds_write2_b32 v11, v12, v15 offset0:2 offset1:3\ns_lshl_b32 s47, s34, 4\ns_add_u32 s47, s47, s35\ns_lshl_b32 s47, s47, 8\ns_add_u32 s47, s47, {WS_F}")
    A(f"""
    v_lshlrev_b32 v28, 2, v0
    v_lshrrev_b32 v11, 1, v5
    v_and_b32 v11, 7, v11
    v_xor_b32 v11, v11, v6
    v_lshlrev_b32 v15, 4, v11
    s_lshl_b32 s38, s36, 12
    v_lshl_add_u32 v11, v5, 7, s38
    """)
    for p in range(4): A(f"v_xor_b32 v12, {p*32}, v15\nv_add_u32 v{30+p}, v11, v12")
    A(f"""
    v_bfe_u32 v15, v0, 2, 2
    v_lshl_add_u32 v11, v6, 3, v15
    v_lshlrev_b32 v11, 7, v11
    v_and_b32 v12, 3, v0
    v_lshlrev_b32 v12, 3, v12
    v_bfe_u32 v7, v0, 4, 1
    v_lshl_add_u32 v12, v7, 5, v12
    s_lshl_b32 s38, s37, 6
    v_add_u32 v12, s38, v12
    v_and_b32 v7, 2, v15
    v_lshlrev_b32 v7, 5, v7
    v_xor_b32 v12, v12, v7
    v_add_u32 v34, v11, v12
    v_mov_b32 v38, 0x3f803f80
    v_mov_b32 v39, 0x3f803f80
    """)
    for p in range(5): A(f"v_add_u32 v{40+p}, 65536, v{30+p}")
    def xa(p, off):  return (30+p, off) if off < 65536 else (40+p, off-65536)
    def wa(off):     return (34, off) if off < 65536 else (44, off-65536)
    def colsum_own(p, d, first):
        lab = A.label()
        A(f"s_cmp_lg_u32 s36, {p}\ns_cbranch_scc1 {lab}")
        for j in range(2): A(f"{M4} {vr(d+4*j,4)}, v[38:39], {vr(WF+4*p+2*j,2)}, {'0' if first else vr(d+4*j,4)}")
        A(f"{lab}:")
    def wread(base, p):
        r, o = wa(base + p*2048)
        A(f"ds_read_b64_tr_b16 {vr(WF+4*p,2)}, v{r} offset:{o}")
        A(f"ds_read_b64_tr_b16 {vr(WF+4*p+2,2)}, v{r} offset:{o+512}")
    def stats_aug():
        A(f"""
        v_lshlrev_b32 v10, 2, v5
        s_lshl_b32 s38, s36, 9
        s_add_u32 s38, s38, {L_ST}
        v_add_u32 v10, s38, v10
        ds_read2_b32 v[12:13], v10 offset0:0 offset1:32
        ds_read2_b32 v[14:15], v10 offset0:64 offset1:96
        s_lshl_b32 s38, s37, 10
        s_add_u32 s38, s38, {L_CSW}
        v_add_u32 v11, s38, v28
        ds_read2st64_b32 v[16:17], v11 offset0:0 offset1:1
        ds_read2st64_b32 v[18:19], v11 offset0:2 offset1:3
        v_cmp_gt_u32 vcc, 32, v0
        v_mov_b32 v22, 0
        v_mov_b32 v23, 0
        v_mov_b32 v25, v8
        v_mov_b32 v26, 0
        v_mov_b32 v27, 0
        s_waitcnt lgkmcnt(2)
        v_add_f32 v12, v12, v13
        v_add_f32 v14, v14, v15
        v_mul_f32 v12, {fhex(1.0/448.0)}, v12
        v_mul_f32 v14, {fhex(1.0/448.0)}, v14
        v_fma_f32 v14, -v12, v12, v14
        v_max_f32 v14, 0, v14
        v_cvt_pk_bf16_f32 v14, v14, v14
        v_and_b32 v14, 0xffff0000, v14
        v_add_f32 v14, {fhex(1e-5)}, v14
        v_cvt_pk_bf16_f32 v14, v14, v14
        v_and_b32 v14, 0xffff0000, v14
        v_sqrt_f32 v14, v14
        v_cvt_pk_bf16_f32 v20, -v12, -v12
        v_cvt_pk_bf16_f32 v14, v14, v14
        v_and_b32 v45, 0xffff0000, v14
        v_rcp_f32 v46, v45
        v_lshrrev_b32 v21, 16, v45
        v_cndmask_b32 v21, 0, v21, vcc
        v_mul_f32 v36, {fhex(C0)}, v46
        v_mul_f32 v37, v46, v46
        v_mul_f32 v37, v37, v46
        v_mul_f32 v37, {fhex(C1)}, v37
        s_waitcnt lgkmcnt(0)
        v_add_f32 v16, v16, v17
        v_add_f32 v18, v18, v19
        v_add_f32 v16, v16, v18
        """)
        split_hilo(A, 24, 16, 17, 18)
        A(f"s_nop 1\n{MF} {vr(ACC0,16)}, v[24:27], v[20:23], {vr(ACC0,16)}")
    def x1addr():
        A(f"""
        v_lshrrev_b32 v10, 4, v0
        s_lshl_b32 s38, s36, 3
        v_add_u32 v10, s38, v10
        v_and_b32 v1, 15, v0
        v_lshlrev_b32 v13, 12, v10
        v_lshl_add_u32 v13, v1, 4, v13
        s_lshl_b32 s48, s35, 17
        s_lshl_b32 s39, s34, 8
        s_add_u32 s48, s48, s39
        s_add_u32 s48, s48, {WS_X1}
        s_add_u32 s49, s48, 16384
        s_add_u32 s51, s39, {WS_X1 + 14*131072}
        """)
    def x1st(q, d):
        if q < 2: A(f"buffer_store_dwordx4 {vr(d,4)}, v13, s[20:23], s{48+q} offen sc1"); return
        LNS2 = A.label("NOSPEC2")
        A(f"s_or_b32 s38, s35, s36\ns_cmp_lg_u32 s38, 0\ns_cbranch_scc1 {LNS2}\ns_mov_b64 exec, 0xffffffff\nbuffer_store_dwordx4 {vr(d,4)}, v13, s[20:23], s51 offen sc1\ns_mov_b64 exec, -1\n{LNS2}:")
    since = [0, 0]
    def phase_b(cg):
        G = gelu_ops(ACC0, 45, 36, 37, 45, 29, 240); gi = 0
        A(f"s_and_b32 s38, s42, 1\ns_mul_i32 s38, s38, 7\ns_sub_u32 s38, s35, s38\ns_mul_i32 s38, s38, 229376\ns_add_u32 s38, s38, {WS_W2P}")
        ksoffs(A, 52, 38)
        wread(baddr[0], 0); wread(baddr[0], 1); wread(baddr[0], 2)
        nw = 0; after = 0
        if cg == 1:
            A('s_cmp_lg_u32 s36, 0\ns_cbranch_scc1 PFF'); poll_check(A, 7, 28, 1, 18, 0, 24)
            A(f'v_mov_b32 v1, 1\nv_mov_b32 v7, {L_CNT+4}\ns_mov_b64 exec, 1\n'+('' if ZH else 'buffer_store_dword v1, off, s[20:23], s47 sc1\n')+f'ds_write_b32 v7, v1\ns_mov_b64 exec, -1\ns_waitcnt lgkmcnt(0)\nPFF:')
        for ks in range(28):
            c, p = divmod(ks, 4)
            n = ks + 3
            if n < 28: wread(baddr[n//4], n % 4)
            A(f"s_waitcnt lgkmcnt({2*min(3, 27-ks)})")
            A(f"{MF} {vr(ACC1,16)}, {vr(WF+4*p,4)}, {vr(XF+4*ks,4)}, {vr(ACC1,16) if ks else '0'}")
            colsum_own(p, ACCD, ks < 4)
            if cg == 1 and ks == XK:
                LSP = A.label("XSPIN")
                x1addr()
                A(f"""
                v_mov_b32 v14, {L_CNT}
                v_mul_u32_u24 v12, 272, v10
                v_lshl_add_u32 v12, v1, 4, v12
                v_add_u32 v12, {L_XT}, v12
                v_mul_u32_u24 v15, 272, v5
                v_add_u32 v15, {L_XT+256}, v15
                {LSP}:
                ds_read_b32 v10, v14
                s_waitcnt lgkmcnt(0)
                v_readfirstlane_b32 s38, v10
                s_cmp_lt_u32 s38, 4
                s_cbranch_scc1 {LSP}
                ds_read_b128 {vr(TF,4)}, v12
                ds_read_b128 {vr(TF+4,4)}, v12 offset:{4*272}
                ds_read_b128 {vr(TF+8,4)}, v15
                """)
            if cg == 1 and ks == XK + 1:
                A("s_waitcnt lgkmcnt(2)")
                for q in range(3): x1st(q, TF+4*q)
                A.stamp(1)
            if cg == 1 and ks == XS:
                A(f"s_cmp_lg_u32 s36, 0\ns_cbranch_scc1 HP1\nv_min_u32 v1, 13, v0\ns_lshl_b32 s38, s34, 12\ns_add_u32 s38, s38, {WS_F}\nv_lshl_add_u32 v1, v1, 8, s38")
                poll_issue(A, 7, 1); A("HP1:"); after = 0
            if ks == WK[cg]:
                LSP = A.label("WSPIN")
                A(f"v_mov_b32 v14, {L_CNT+4}\n{LSP}:\nds_read_b32 v15, v14\ns_waitcnt lgkmcnt(0)\nv_readfirstlane_b32 s38, v15\ns_cmp_eq_u32 s38, 0\ns_cbranch_scc1 {LSP}")
            while ks >= WK[cg] and nw < (ks+1-WK[cg])*NB//(28-WK[cg]): frag_ld(A, XF+4*nw, 52, nw//2, nw % 2); nw += 1; after += 1; since[cg] += 1
            if ks >= 2:
                cost = 0
                while gi < len(G) and cost < GC:
                    A(G[gi]); cost += 8 if ("exp" in G[gi] or "rcp" in G[gi]) else 4; after += "store" in G[gi]; since[cg] *= "store" not in G[gi]; gi += 1
                    if gi == len(G): print('G done at ks', ks)
        while gi < len(G): A(G[gi]); after += "store" in G[gi]; since[cg] *= "store" not in G[gi]; gi += 1
        if cg == 1:
            twgen(A, 0, TF); twgen(A, 1, TF+4)
            A('s_cmp_lg_u32 s36, 0\ns_cbranch_scc1 HP2'); poll_check(A, 7, 1, 0, 0, after); A('HP2:'); A.stamp(2)
        A(f"""
        s_lshl_b32 s38, s32, 8
        s_add_u32 s38, s38, {L_CSW+2048}
        v_add_u32 v10, s38, v28
        s_nop 2
        v_add_f32 v12, v{ACCD}, v{ACCD+4}
        ds_write_b32 v10, v12
        s_waitcnt lgkmcnt(0)
        s_barrier
        """)
    def aug_b():
        A(f"""
        v_add_u32 v11, {2048}, v11
        ds_read2st64_b32 v[16:17], v11 offset0:0 offset1:1
        ds_read2st64_b32 v[18:19], v11 offset0:2 offset1:3
        v_mov_b32 v25, v9
        s_waitcnt lgkmcnt(0)
        v_add_f32 v16, v16, v17
        v_add_f32 v18, v18, v19
        v_add_f32 v16, v16, v18
        """)
        split_hilo(A, 24, 16, 17, 18)
        A(f"s_nop 1\n{MF} {vr(ACC1,16)}, v[24:27], v[20:23], {vr(ACC1,16)}")
    LB = A.label("CG1")
    A(f"s_cmp_eq_u32 s37, 1\ns_cbranch_scc1 {LB}")
    for cg in range(2):
        if cg == 1: A(f"{LB}:")
        if cg == 1 and 'a' in X: A("s_setprio 1")
        if cg == 0:
            t1gen(3)
            A(f"""
            v_cvt_f32_u32 v10, v5
            v_mul_f32 v10, {fhex(1.0/2048.0)}, v10
            v_lshlrev_b32 v11, 8, v6
            v_add_u32 v11, s44, v11
            v_cvt_f32_u32 v11, v11
            v_mul_f32 v11, v11, v10
            """)
            for kk in range(2):
                for i in range(8): A(f"v_fmamk_f32 v{240+i}, v10, {fhex(float(64*(16*kk+8*(i//4)+i%4)))}, v11")
                for i in range(8): A(f"v_sin_f32 v{248+i}, v{240+i}")
                for i in range(8): A(f"v_cos_f32 v{240+i}, v{240+i}")
                A("s_nop 0")
                for i in range(4): A(f"v_cvt_pk_bf16_f32 v{ACC1+4*kk+i}, v{240+2*i}, v{241+2*i}")
                for i in range(4): A(f"v_cvt_pk_bf16_f32 v{ACC1+8+4*kk+i}, v{248+2*i}, v{249+2*i}")
        per = 4 if cg == 0 else 3
        def reads(c, ps):
            if 'r' in X: return
            for p in ps:
                ks = 4*c + p; slot = c % 5
                r, o = xa(p, slot*SLOT)
                A(f"ds_read_b128 {vr(XF+4*ks,4)}, v{r} offset:{o}")
                wread(slot*SLOT + 16384, p)
                if cg == 0: A(f"ds_read_b128 {vr(TF+4*p,4)}, v35 offset:{ks*1024}")
        def comp(c, p, wait):
            ks = 4*c + p
            A(f"s_waitcnt lgkmcnt({wait})")
            A(f"{MF} {vr(ACC0,16)}, {vr(WF+4*p,4)}, {vr(XF+4*ks,4)}, {vr(ACC0,16) if ks else '0'}")
            if cg == 0:
                A(f"{MF} {vr(ACCD,16)}, {vr(XF+4*ks,4)}, {vr(TF+4*p,4)}, {vr(ACCD,16) if ks else '0'}")
            elif 'v' in X:
                for j in range(4): A(f"v_lshlrev_b32 v{TF+2*j}, 16, v{XF+4*ks+j}\nv_and_b32 v{TF+1+2*j}, 0xffff0000, v{XF+4*ks+j}")
                for j in range(4): A(f"v_add_f32 v{TF+8}, v{TF+8}, v{TF+2*j}\nv_fmac_f32 v{TF+9}, v{TF+2*j}, v{TF+2*j}\nv_add_f32 v{TF+10}, v{TF+10}, v{TF+2*j+1}\nv_fmac_f32 v{TF+11}, v{TF+2*j+1}, v{TF+2*j+1}")
            else:
                for j in range(2):
                    x2 = vr(XF+4*ks+2*j, 2)
                    A(f"{M4} {vr(TF+8*j,4)}, {x2}, {x2}, {vr(TF+8*j,4) if ks else '0'}")
                    A(f"{M4} {vr(TF+8*j+4,4)}, v[38:39], {x2}, {vr(TF+8*j+4,4) if ks else '0'}")
            colsum_own(p, 240, c == 0)
            if SE == 2 and ks == SK: prefill()
            for _ in range(2):
                if queue and queue[0][3] <= 4*c + p:
                    t = queue.pop(0); issued.append(t[:2])
                    if 'd' in X: issued.pop()
                    elif t[0] == 'G': dma1(t[1], t[1] % 5, t[2])
                    else: dma_B(t[1])
        queue = [('G', c, q, 0 if c < 5 else 4*(c-5)+2) for c in range(PRE, 7) for q in range(3)] + [('B', c, 0, 4*(2+c//3)+2) for c in range(7)]
        for q in range(4): A(f"v_mov_b32 v{16+q}, -1")
        issued = [('G', c) for c in range(3) for q in range(3)] + [('b', 0)] * (2 if 'p' in X else 3) + [('G', c) for c in range(3, PRE) for q in range(3)] + [('b', 0)] * (('f' not in X) + (HA+1)*(SE == 1))
        ppos = [None]; posted = [False]
        if cg == 1: x1addr()
        def prefill():
            if SE != 1:
                for q in range(HA): preS(q, 16)
                preU(16); issued.extend([('b', 0)] * (HA+1))
            if cg == 1:
                for q in range(3): x1st(q, 16)
                issued.extend([('b', 0)] * 2)
            else:
                A(f"s_or_b32 s38, s35, s36\ns_cmp_lg_u32 s38, 0\ns_cbranch_scc1 NOV\nv_lshrrev_b32 v12, 3, v5\nv_and_b32 v15, 7, v5\nv_lshlrev_b32 v12, 15, v12\nv_lshl_add_u32 v12, v15, 9, v12\ns_lshl_b32 s38, s34, 17\ns_add_u32 s38, s38, {WS_U+7*4096}\nbuffer_store_dwordx4 v[16:19], v12, s[20:23], s38 offen sc1\nNOV:")
            ppos[0] = len(issued)
        def post(wait):
            posted[0] = True
            if cg == 0 or not ZH: return
            A("s_cmp_lg_u32 s36, 0\ns_cbranch_scc1 ZP2"); poll_check(A, 7, 28, 1, 12, wait, 24)
            A("v_mov_b32 v1, 1\ns_mov_b64 exec, 1\nbuffer_store_dword v1, off, s[20:23], s47 sc1\ns_mov_b64 exec, -1\nZP2:")
        if SE < 2: prefill()
        def vm(c): return 0 if ('G', c) not in issued else len(issued) - 1 - max(i for i, t in enumerate(issued) if t == ('G', c))
        if cg == 0: A.stamp(1)
        A(f"s_waitcnt vmcnt({vm(0)}) lgkmcnt(0)\ns_barrier")
        if cg == 0: A.stamp(2)
        reads(0, range(4))
        for c in range(7):
            comp(c, 0, 3*per)
            comp(c, 1, 2*per)
            if c < 6:
                A(f"s_waitcnt vmcnt({vm(c+1)}) lgkmcnt(0)\ns_barrier")
                reads(c+1, (0, 1))
                if cg == 1 and c == 0 and ZH:
                    A("s_cmp_lg_u32 s36, 0\ns_cbranch_scc1 ZP1\ns_lshl_b32 s38, s34, 2\ns_lshr_b32 s39, s35, 2\ns_add_u32 s38, s38, s39\nv_cmp_eq_u32 vcc, s38, v0")
                    poll_issue(A, 7, 28, 24); A("s_nop 0\nv_cndmask_b32 v1, 0, 1, vcc\nZP1:")
                if c == 0: zpos = len(issued)
                if not posted[0] and ppos[0] is not None and len(issued) - 1 - vm(c+1) >= ppos[0] and c > 0: post(len(issued) - zpos)
                comp(c, 2, 15)
                comp(c, 3, 15)
                reads(c+1, (2, 3))
            else:
                assert posted[0] or not ZH
                if cg == 1: A('s_cmp_lg_u32 s36, 0\ns_cbranch_scc1 W2P1'); poll_issue(A, 7, 28, 24); need_spare(A, 1, 18, 1); A('W2P1:')
                comp(c, 2, per); comp(c, 3, 0)
        if cg == 1:
            A(f"""
            s_lshl_b32 s38, s36, 9
            s_add_u32 s38, s38, {L_ST}
            v_add_u32 v10, s38, v28
            v_and_b32 v12, 1, v0
            v_cmp_eq_u32 vcc, 1, v12
            v_and_b32 v12, 2, v0
            v_cmp_eq_u32 s[48:49], 2, v12
            v_add_f32 v36, v{TF+4}, v{TF+12}
            """)
            for j in range(4): A(f"v_add_f32 v{TF+j}, v{TF+j}, v{TF+8+j}")
            A(f"""
            v_cndmask_b32 v12, v{TF}, v{TF+1}, vcc
            v_cndmask_b32 v13, v{TF+2}, v{TF+3}, vcc
            v_cndmask_b32 v37, v12, v13, s[48:49]
            ds_write2st64_b32 v10, v36, v37 offset0:0 offset1:1
            """)
        A(f"""
        s_lshl_b32 s38, s32, 8
        s_add_u32 s38, s38, {L_CSW}
        v_add_u32 v10, s38, v28
        s_nop 2
        v_add_f32 v12, v240, v244
        ds_write_b32 v10, v12
        """)
        A("s_waitcnt vmcnt(0) lgkmcnt(0)\ns_barrier")
        A.stamp(3)
        stats_aug()
        if cg == 0:
            A(f"""
            v_mul_f32 v13, {fhex(SCALE)}, v46
            s_lshl_b32 s38, s36, 7
            s_add_u32 s38, s38, {L_RR}
            v_lshl_add_u32 v10, v5, 2, s38
            ds_write_b32 v10, v13
            v_lshl_add_u32 v10, v6, 4, s38
            ds_read_b128 v[{TF}:{TF+3}], v10
            ds_read_b128 v[{TF+4}:{TF+7}], v10 offset:32
            ds_read_b128 v[{TF+8}:{TF+11}], v10 offset:64
            ds_read_b128 v[{TF+12}:{TF+15}], v10 offset:96
            v_or_b32 v12, s35, v0
            v_cmp_eq_u32 vcc, 0, v12
            v_mov_b32 v12, 0x43e0
            v_mov_b32 v17, 0
            v_cndmask_b32 v16, 0, v12, vcc
            v_mov_b32 v18, 0
            v_mov_b32 v19, 0
            v_mul_u32_u24 v10, 272, v5
            v_lshl_add_u32 v10, v6, 6, v10
            {MF} {vr(ACCD,16)}, v[20:23], v[16:19], {vr(ACCD,16)}
            s_nop 0
            s_lshl_b32 s38, s36, 2
            s_add_u32 s38, s38, {L_XT}
            v_add_u32 v10, s38, v10
            s_nop 7
            s_waitcnt lgkmcnt(0)
            """)
            for j in range(16): A(f"v_mul_f32 v{ACCD+j}, v{ACCD+j}, v{TF+j}")
            for j in range(8): A(f"v_cvt_pk_bf16_f32 v{12+j}, v{ACCD+2*j}, v{ACCD+2*j+1}")
            A(f"""
            s_nop 1
            {MF} {vr(TF,16)}, v[12:15], {vr(ACC1,4)}, 0
            {MF} {vr(ACCD,16)}, v[12:15], {vr(ACC1+8,4)}, 0
            {MF} {vr(TF,16)}, v[16:19], {vr(ACC1+4,4)}, {vr(TF,16)}
            {MF} {vr(ACCD,16)}, v[16:19], {vr(ACC1+12,4)}, {vr(ACCD,16)}
            """)
            A("s_nop 7\ns_nop 3")
            for j in range(8):
                A(f"v_add_f32 v{240+j}, v{TF+j}, v{ACCD+8+j}")
                A(f"v_sub_f32 v{12+j}, v{TF+8+j}, v{ACCD+j}")
            LNS = A.label("NOSPEC")
            A(f"""
            s_cmp_lg_u32 s35, 0
            s_cbranch_scc1 {LNS}
            s_mov_b64 exec, 0xffffffff
            v_mul_f32 v240, 0.5, v{TF}
            v_mul_f32 v12, -0.5, v{ACCD}
            v_mul_f32 v1, 0.5, v{TF+8}
            v_mul_f32 v7, -0.5, v{ACCD+8}
            v_cvt_pk_bf16_f32 v1, v1, v7
            ds_write_b32 v10, v1 offset:256
            s_mov_b64 exec, -1
            {LNS}:
            """)
            for j in range(8):
                A(f"v_cvt_pk_bf16_f32 v{240+j}, v{240+j}, v{12+j}")
                A(f"ds_write_b32 v10, v{240+j} offset:{(8*(j//4)+j%4)*16}")
            A(f"v_mov_b32 v12, {L_CNT}\nv_mov_b32 v13, 1\ns_mov_b64 exec, 1\ns_waitcnt lgkmcnt(0)\nds_add_u32 v12, v13\ns_mov_b64 exec, -1\ns_waitcnt lgkmcnt(0)")
        A.stamp(4)
        phase_b(cg)
        if cg == 0: A("s_branch K1TAIL")
    A("K1TAIL:")
    A.stamp(5)
    aug_b()
    for nw in range(NB, NB+NT): frag_ld(A, XF+4*nw, 52, nw//2, nw % 2)
    A("s_nop 7\ns_nop 3")
    G = gelu_ops(ACC1, 46, 36, 37, 45, 29, 240); GS = int(os.environ.get('GS', '30'))
    for g in G[:GS]: A(g)
    if HA == 0: signal(A, L_CNT+8, 8, 1, min(since) + NT + sum('store' in g for g in G[:GS]), 10, 11)
    for g in G[GS:]: A(g)
    A.stamp(6)
    gen_k3p(A, L_CNT, NB+NT, HA)
    A(f"{Lspare}:")
    A(f"""
    s_sub_u32 s48, s43, 28
    s_lshl_b32 s48, s48, 3
    s_add_u32 s48, s48, s42
    s_lshr_b32 s47, s48, 1
    s_lshl_b32 s47, s47, 4
    s_and_b32 s33, s48, 1
    s_add_u32 s47, s47, s33
    s_add_u32 s46, s47, 14
    s_lshl_b32 s47, s46, 8
    s_add_u32 s47, s47, {WS_F}
    s_waitcnt lgkmcnt(0)
    """)
    A.srd(12, 6, 1605632)
    A.srd(20, 30, WS_SIZE)
    A.srd(24, 28, 256)
    def w2code():
        A(f"""
        s_lshl_b32 s33, s48, 3
        s_add_u32 s33, s33, s32
        v_lshrrev_b32 v92, 5, v0
        v_and_b32 v93, 31, v0
        v_mul_u32_u24 v92, 3584, v92
        v_lshl_add_u32 v92, v93, 1, v92
        v_add_u32 v93, 7168, v92
        v_mov_b32 v248, 0
        v_mov_b32 v249, 0
        v_mov_b32 v250, 0
        v_mov_b32 v251, 0
        s_lshl_b32 s38, s33, 10
        s_add_u32 s38, s38, {WS_F}
        buffer_store_dwordx4 v[248:251], v4, s[20:23], s38 offen sc1
        """)
        for i in range(7):
            A(f"s_add_u32 s34, s33, {256*i}\ns_mul_hi_u32 s35, s34, {(2**32+13)//14}\ns_mul_i32 s36, s35, 14\ns_sub_u32 s36, s34, s36")
            A(f"s_mul_i32 s37, s35, 14336\ns_lshl_b32 s38, s36, 6\ns_add_u32 s37, s37, s38")
            A(f"s_mul_i32 s38, s36, 112\ns_add_u32 s38, s38, s35\ns_lshl_b32 s38, s38, 10\ns_add_u32 s{60+i}, s38, {WS_W2P}")
            for j in range(8):
                A(f"buffer_load_ushort v{8+8*i+j}, v{92+j//4}, s[12:15], s37 offen offset:{896*(j%4)}")
        if ZH: A("s_cmp_ge_u32 s33, 64\ns_cbranch_scc1 NOZ\ns_lshl_b32 s38, s33, 2\nv_mov_b32 v248, 1\ns_waitcnt vmcnt(56)\ns_mov_b64 exec, 1\nbuffer_store_byte v248, off, s[24:27], s38 sc1\ns_mov_b64 exec, -1\nNOZ:")
        for i in range(7):
            if i == 6: A(f"s_cmp_ge_u32 s33, 32\ns_cbranch_scc1 W2DONE")
            A(f"s_waitcnt vmcnt({min(63, 8*(6-i)+i)})")
            for j in range(4): A(f"v_lshl_or_b32 v{64+4*i+j}, v{8+8*i+2*j+1}, 16, v{8+8*i+2*j}")
            A(f"buffer_store_dwordx4 {vr(64+4*i,4)}, v4, s[20:23], s{60+i} offen sc1")
        A("W2DONE:")
    gen_k2p(A, w2code)
    A(f"{Lend}:\ns_endpgm")
    return 256
```

```python
from common import *
L3_TW = 131072
MF = "v_mfma_f32_32x32x16_bf16"
TWO = int(os.environ.get('TWO', '0'))
LSC = os.environ.get('LSC', '')
HSC = ' sc1'
DRY = int(os.environ.get('DRY', '0'))
SLP = int(os.environ.get('SLP', '2'))
def poll_issue(A, vP, vL4, srd=20): A(f"buffer_load_dword v{vP}, v{vL4}, s[{srd}:{srd+3}], 0 offen sc1")
def poll_check(A, vP, vL4, vNeed, vT, wait, srd=20):
    L = A.label("PL"); OK = A.label("POK")
    A(f"""
    s_waitcnt vmcnt({wait})
    {L}:
    {f'v_and_b32 v{vT}, v{vP}, v{vNeed}' if srd == 24 else ''}
    {f'v_cmp_ne_u32 vcc, v{vT}, v{vNeed}' if srd == 24 else f'v_cmp_ne_u32 vcc, 1, v{vP}'}
    s_nop 1
    s_cbranch_vccz {OK}
    s_sub_u32 s59, s59, 1
    s_cbranch_scc1 {OK}
    s_sleep {SLP}
    buffer_load_dword v{vP}, v{vL4}, s[{srd}:{srd+3}], 0 offen sc1
    s_waitcnt vmcnt(0)
    s_branch {L}
    {OK}:
    """)
def need_spare(A, vNeed, vT, lvl):
    A(f"v_and_b32 v{vT}, 3, v0\nv_cmp_eq_u32 vcc, 3, v{vT}\nv_mov_b32 v{vT}, {lvl*0x01010000:#x}\ns_nop 0\nv_cndmask_b32 v{vNeed}, 0, v{vT}, vcc")
def signal(A, cnt_addr, n, val, wait, t0, t1):
    L = A.label("SG")
    A(f"""
    v_mov_b32 v{t0}, {cnt_addr}
    v_mov_b32 v{t1}, 1
    s_mov_b64 exec, 1
    s_waitcnt vmcnt({wait})
    ds_add_rtn_u32 v{t1}, v{t0}, v{t1}
    v_mov_b32 v{t0}, 1
    s_add_u32 s68, s47, {val*65536}
    s_waitcnt lgkmcnt(0)
    v_readfirstlane_b32 s67, v{t1}
    s_cmp_lg_u32 s67, {n-1}
    s_cbranch_scc1 {L}
    buffer_store_dword v{t0}, off, s[20:23], s68 sc1
    {L}:
    s_mov_b64 exec, -1
    """)
WA = int(os.environ.get('WA', '0'))
def check(A, regs, t, reload):
    L = A.label("CK"); OK = A.label("CKOK")
    A(f"{L}:\nv_max_u32 v{t}, v{regs[0]}, v{regs[1]}")
    for i in range(2, len(regs), 2): A(f"v_max3_u32 v{t}, v{t}, v{regs[i]}, v{regs[i+1]}")
    A(f"v_cmp_eq_u32 vcc, -1, v{t}\ns_nop 1\ns_cbranch_vccz {OK}\ns_sub_u32 s59, s59, 1\ns_cbranch_scc1 {OK}\ns_sleep {SLP}")
    reload()
    A(f"s_waitcnt vmcnt(0)\ns_branch {L}\n{OK}:")
def twgen(A, r, T):
    A(f"""
    s_and_b32 s38, s42, 1
    s_lshl_b32 s39, s34, 1
    s_add_u32 s38, s38, s39
    s_lshl_b32 s38, s38, 1
    s_add_u32 s38, s38, {r}
    v_lshl_add_u32 v{T}, v5, 6, s38
    s_lshl_b32 s39, s36, 3
    v_lshl_add_u32 v{T+1}, v6, 2, s39
    v_cvt_f32_u32 v{T}, v{T}
    v_cvt_f32_u32 v{T+1}, v{T+1}
    v_mul_f32 v{T}, {fhex(1/2048)}, v{T}
    v_mul_f32 v{T+1}, v{T+1}, v{T}
    """)
    for j in range(4): A(f"v_fmamk_f32 v{12+j}, v{T}, {fhex(float(j))}, v{T+1}")
    for j in range(4): A(f"v_sin_f32 v{16+j}, v{12+j}")
    for j in range(4): A(f"v_cos_f32 v{12+j}, v{12+j}")
    A(f"s_lshl_b32 s38, s36, 11\ns_add_u32 s38, s38, {L3_TW + r*8192}\nv_add_u32 v10, s38, v29")
    for j in range(4): A(f"v_cvt_pk_bf16_f32 v{T+j}, v{12+j}, -v{16+j}")
    for j in range(4): A(f"v_cvt_pk_bf16_f32 v{12+j}, v{16+j}, v{12+j}")
    A(f"ds_write_b128 v10, {vr(T,4)}\nds_write_b128 v10, v[12:15] offset:1024")
def ksoffs(A, d, base):
    A("s_mul_i32 s67, s32, 7")
    for i in range(7):
        A(f"s_lshr_b32 s{d+i}, s67, 2\ns_lshl_b32 s{d+i}, s{d+i}, 2\ns_add_u32 s{d+i}, s{d+i}, s67\ns_lshl_b32 s{d+i}, s{d+i}, 10\ns_add_u32 s{d+i}, s{d+i}, s{base}\ns_add_u32 s67, s67, 1")
def frag_ld(A, dst, d, st, c, va=29, LSC=LSC):
    k = (4096 if st >= 7 else 0) + c*114688
    if k: A(f"s_add_u32 s67, s{d+st%7}, {k}")
    A(f"buffer_load_dwordx4 {vr(dst,4)}, v{va}, s[20:23], s{67 if k else d+st%7} offen{LSC}")

def gen_k3p(A, L_CNT, NB, HA):
    A.on = STAMP_PART == 3
    W2 = 128; ACC = 64; RING = [16, 24, 32, 40, 48, 56, 240, 248]
    A(f"""
    s_setprio 0
    s_load_dwordx4 s[8:11], s[0:1], 56
    s_and_b32 s38, s42, 1
    s_mul_i32 s39, s38, 7
    s_sub_u32 s35, s35, s39
    s_lshl_b32 s33, s34, 1
    s_add_u32 s33, s33, s38
    s_lshl_b32 s33, s33, 1
    s_mul_i32 s39, s33, 114688
    """)
    ksoffs(A, 60, 39)
    A(f"v_add_u32 v1, {L3_TW}, v29\nv_mov_b32 v15, v29")
    U = [160, 176]; TW = [192, 16]; T3 = 128; Y = 224; XB = 48
    def t3(g):
        c, a = divmod(g, 4); d = T3 + 4*g
        if a == 0:
            A(f"""
            s_lshl_b32 s38, s35, 6
            s_add_u32 s38, s38, {32*c}
            v_add_u32 v2, s38, v5
            v_cvt_f32_u32 v2, v2
            s_lshl_b32 s38, s32, 5
            v_lshl_add_u32 v4, v6, 2, s38
            v_cvt_f32_u32 v4, v4
            v_mul_f32 v2, {fhex(1/448)}, v2
            v_mul_f32 v4, v4, v2
            """)
        for j in range(4): A(f"v_fmamk_f32 v{d+j}, v2, {fhex(float(8*a+j))}, v4")
        for j in range(4): A(f"v_sin_f32 v{9+j}, v{d+j}")
        for j in range(4): A(f"v_cos_f32 v{d+j}, v{d+j}")
        A("s_nop 0")
        for j in range(4): A(f"v_cvt_pk_bf16_f32 v{d+j}, v{d+j}, -v{9+j}")
    A.stamp(1)
    Q = []
    nw = [NB]
    def ld(st, q=True):
        while q and nw[0] < min(28, 2*st+2+WA): frag_ld(A, W2+4*nw[0], 52, nw[0]//2, nw[0] % 2, 15); nw[0] += 1; Q.append(('w', 0))
        for r in range(2):
            frag_ld(A, RING[st % 8] + 4*r, 60, st, r, 15, HSC if (HA and st < 7) else '')
            if q: Q.append(('h', st))
    def ldu(r, q=True):
        for ks in range(4):
            A(f"buffer_load_dwordx4 {vr(U[r]+4*ks,4)}, v8, s[20:23], s{44+r} offen offset:{ks*1024} sc1")
            if q: Q.append(('u', r))
    def wait(tag): return len(Q) - 1 - max(i for i, t in enumerate(Q) if t == tag)
    A(f"""
    s_mul_i32 s38, s32, 7
    s_add_u32 s67, s38, 6
    s_lshr_b32 s38, s38, 2
    s_lshr_b32 s67, s67, 2
    v_add_u32 v14, s38, v0
    v_min_u32 v14, s67, v14
    s_lshl_b32 s38, s34, 12
    s_add_u32 s38, s38, {WS_F + 65536}
    v_lshl_add_u32 v14, v14, 8, s38
    """)
    if HA == 0:
        poll_issue(A, 3, 14)
        while nw[0] < 28: frag_ld(A, W2+4*nw[0], 52, nw[0]//2, nw[0] % 2, 15); nw[0] += 1; Q.append(('w', 0))
        signal(A, L_CNT+12, 8, 2, len(Q)+1, 10, 11)
        poll_check(A, 3, 14, 0, 0, len(Q))
    for st in range(7): ld(st)
    if HA: signal(A, L_CNT+12, 8, 2, len(Q), 10, 11)
    A("v_add_u32 v14, 65536, v14")
    nxt = 7; FS = int(os.environ.get('FS', '0')); FC = int(os.environ.get('FC', '2'))
    A.stamp(2)
    A('s_waitcnt lgkmcnt(0)')
    A.srd(16, 8, 896); A.srd(4, 10, 1835008)
    A(f"""
    v_cmp_ne_u32 vcc, 0, v5
    s_cmp_eq_u32 s32, 7
    s_cselect_b64 vcc, vcc, 0
    v_mov_b32 v8, 0x80000000
    s_lshl_b32 s44, s33, 15
    v_cndmask_b32 v8, v15, v8, vcc
    s_lshl_b32 s38, s32, 12
    s_add_u32 s44, s44, s38
    s_add_u32 s44, s44, {WS_U}
    s_add_u32 s45, s44, 32768
    """)
    def acc(r, c): return ACC + 32*r + 16*c
    T3S = [3, 4, 4, 5, 5, 6, 7, 8]
    DS = int(os.environ.get('DS', '10')); TWL = [192, 196, 200, 204, 208, 212, 32, 36]; YY = [240, 16]; XB = 192
    def twrd(r):
        for q in range(8): A(f"ds_read_b128 {vr(TWL[q],4)}, v1 offset:{r*8192+q*1024}")
    def dft():
        twrd(0)
        for r in range(2):
            A(f"s_waitcnt vmcnt({wait(('u', r))})")
            check(A, list(range(U[r], U[r]+16)), 3, lambda: ldu(r, False))
            for ks in range(4):
                A(f"s_waitcnt lgkmcnt({6-2*ks})")
                for c in range(2):
                    A(f"{MF} {vr(YY[c],16)}, {vr(U[r]+4*ks,4)}, {vr(TWL[2*ks+c],4)}, {vr(YY[c],16) if ks else '0'}")
            if r == 0: twrd(1); A("s_nop 7")
            else:
                A(f"buffer_load_dwordx4 {vr(XB,4)}, v12, s[12:15], 0 offen\nbuffer_load_dwordx4 {vr(XB+4,4)}, v13, s[16:19], 0 offen\ns_nop 7\ns_nop 3"); Q.extend([('x', 0)]*2)
            for j in range(16): A(f"v_cvt_pk_bf16_f32 v{U[r]+j}, v{YY[0]+j}, v{YY[1]+j}")
            A("s_nop 1")
            for a_ in range(4):
                for c in range(2):
                    a = acc(r, c)
                    A(f"{MF} {vr(a,16)}, {vr(T3+16*c+4*a_,4)}, {vr(U[r]+4*a_,4)}, {vr(a,16)}")
    PS = int(os.environ.get('PS', '3')); PC = int(os.environ.get('PC', '7'))
    for st in range(14):
        sl = RING[st % 8]
        A(f"s_waitcnt vmcnt({wait(('h', st))})")
        if HA and st < 7: check(A, [sl, sl+4], 3, lambda: ld(st, False))
        if st == 0: A.stamp(3)
        for r in range(2):
            for c in range(2):
                a = acc(r, c)
                A(f"{MF} {vr(a,16)}, {vr(W2+8*st+4*c,4)}, {vr(sl+4*r,4)}, {vr(a,16) if st else '0'}")
        if st == FS: poll_issue(A, 7, 14); Q.append(('p', 0))
        if st == FC: poll_check(A, 7, 14, 0, 0, wait(('p', 0)))
        if st == PC: ldu(0); ldu(1)
        while st >= FC and nxt <= min(13 if st >= PC else DS, st+8): ld(nxt); nxt += 1
        for g in range(8):
            if T3S[g] == st: t3(g)
        if st == 9:
            A(f"""
    v_and_b32 v9, 15, v5
    v_xor_b32 v9, v9, v6
    v_lshlrev_b32 v9, 4, v9
    v_lshl_add_u32 v9, v5, 8, v9
    s_lshl_b32 s38, s32, 14
    v_add_u32 v9, s38, v9
    s_lshl_b32 s38, s32, 3
    v_lshrrev_b32 v10, 3, v0
    v_add_u32 v10, s38, v10
    v_and_b32 v11, 7, v0
    v_and_b32 v12, 31, v10
    v_lshrrev_b32 v13, 5, v10
    v_lshl_add_u32 v12, v12, 6, v13
    v_add_u32 v12, s33, v12
    v_mul_u32_u24 v12, 896, v12
    s_lshl_b32 s38, s35, 7
    v_lshl_add_u32 v13, v11, 4, s38
    v_add_u32 v12, v12, v13
    v_and_b32 v7, 15, v10
    v_lshlrev_b32 v11, 1, v11
    v_xor_b32 v11, v11, v7
    v_lshlrev_b32 v11, 4, v11
    v_lshl_add_u32 v10, v10, 8, v11
            """)
        if st == DS: dft()
    A.stamp(4)
    for q in range(1, 8): A(f"v_xor_b32 v{16+q}, {q*32}, v9")
    A("v_mov_b32 v16, v9\ns_nop 3")
    A.stamp(5)
    for r in range(2):
        for c in range(2):
            for a_ in range(4):
                A(f"ds_write_b128 v{16+4*c+a_}, {vr(acc(r,c)+4*a_,4)} offset:{r*8192}")
    A("v_xor_b32 v5, 16, v10\nv_add_u32 v7, 65536, v10\nv_add_u32 v8, 65536, v5\ns_waitcnt vmcnt(0)")
    for n in range(4):
        A(f"v_lshlrev_b32 v{32+2*n}, 16, v{XB+n}\nv_and_b32 v{33+2*n}, 0xffff0000, v{XB+n}")
        A(f"v_lshlrev_b32 v{40+2*n}, 16, v{XB+4+n}\nv_and_b32 v{41+2*n}, 0xffff0000, v{XB+4+n}")
    for n in range(8): A(f"v_add_f32 v{32+n}, v{32+n}, v{40+n}")
    A("s_waitcnt lgkmcnt(0)\ns_barrier")
    A.stamp(6)
    R = 128
    for w in range(8):
        A(f"ds_read_b128 {vr(R+8*w,4)}, v{10 if w < 4 else 7} offset:{(w%4)*16384}")
        A(f"ds_read_b128 {vr(R+8*w+4,4)}, v{5 if w < 4 else 8} offset:{(w%4)*16384}")
    for w in range(8):
        A(f"s_waitcnt lgkmcnt({min(15,14-2*w)})")
        for n in range(8): A(f"v_add_f32 v{32+n}, v{32+n}, v{R+8*w+n}")
    for n in range(4): A(f"v_cvt_pk_bf16_f32 v{40+n}, v{32+2*n}, v{33+2*n}")
    A("buffer_store_dwordx4 v[40:43], v12, s[4:7], 0 offen")
    A.stamp_flush(2, 32)
    A("s_endpgm")

def gen_k2p(A, w2code):
    A.on = True
    AM = 32; PP = 64; B = [96, 112]; BP = 128; Z = 144; W = [176, 208]
    A(f"""
    v_and_b32 v2, 15, v0
    v_lshrrev_b32 v3, 4, v0
    v_lshlrev_b32 v4, 4, v0
    v_mul_u32_u24 v5, 57600, v3
    v_lshlrev_b32 v244, 15, v3
    v_lshl_add_u32 v244, v2, 4, v244
    v_lshrrev_b32 v245, 2, v2
    v_lshlrev_b32 v245, 9, v245
    v_and_b32 v8, 3, v2
    v_lshl_add_u32 v245, v8, 2, v245
    v_lshl_add_u32 v245, v3, 17, v245
    s_and_b32 s49, s32, 3
    s_lshr_b32 s38, s32, 2
    s_lshr_b32 s50, s48, 3
    s_lshl_b32 s50, s50, 2
    s_add_u32 s50, s50, s38
    s_lshl_b32 s50, s50, 3
    s_and_b32 s38, s48, 7
    s_add_u32 s50, s50, s38
    s_add_u32 s51, s50, 16
    """)
    for p in range(2):
        A(f"""
        s_lshr_b32 s33, s{50+p}, 3
        s_and_b32 s34, s{50+p}, 7
        s_lshl_b32 s35, s34, 2
        s_add_u32 s35, s35, s49
        s_lshl_b32 s36, s33, 5
        s_add_u32 s36, s36, s35
        s_lshl_b32 s36, s36, 12
        s_add_u32 s{52+p}, s36, {WS_X1}
        s_mul_i32 s37, s35, 450
        s_lshl_b32 s38, s33, 5
        s_add_u32 s37, s37, s38
        v_lshl_add_u32 v{6+p}, v2, 1, v5
        v_add_u32 v{6+p}, s37, v{6+p}
        s_lshl_b32 s38, s49, 19
        s_lshr_b32 s39, s33, 1
        s_lshl_b32 s39, s39, 12
        s_add_u32 s38, s38, s39
        s_lshl_b32 s39, s34, 9
        s_add_u32 s38, s38, s39
        s_and_b32 s39, s33, 1
        s_lshl_b32 s39, s39, 8
        s_add_u32 s38, s38, s39
        s_add_u32 s{54+p}, s38, {WS_U}
        """)
    LN = A.label("K2N")
    A(f"""
    s_mov_b32 s56, 0
    s_cmp_lt_u32 s51, 112
    s_cbranch_scc1 {LN}
    s_mov_b32 s56, 2
    s_cmp_lg_u32 s32, 0
    s_cbranch_scc1 {LN}
    s_mov_b32 s56, 1
    s_bfe_u32 s57, s48, 0x10002
    s_lshl_b32 s53, s57, 12
    s_add_u32 s53, s53, {WS_X1 + 14*131072}
    s_mul_i32 s37, s57, 7200
    s_add_u32 s37, s37, 448
    v_mul_u32_u24 v7, 450, v2
    v_add3_u32 v7, v7, v5, s37
    s_and_b32 s37, s48, 3
    v_lshrrev_b32 v8, 2, v2
    v_cmp_eq_u32 s[68:69], s37, v8
    v_bfrev_b32 v8, 1
    s_nop 0
    v_cndmask_b32 v7, v8, v7, s[68:69]
    s_lshl_b32 s38, s57, 11
    s_add_u32 s55, s38, {WS_U + 7*4096}
    {LN}:
    """)
    w2code()
    A.srd(12, 88, 921600); A.srd(16, 90, 921600)
    for r in range(0, 16, 4): A(f"v_mov_b32 v{B[1]+r}, 0")
    for p in range(2):
        LS = A.label("K2W")
        if p: A(f"s_cmp_eq_u32 s56, 2\ns_cbranch_scc1 {LS}\ns_waitcnt vmcnt(24)")
        else: A(f"v_mov_b32 v8, 1\ns_waitcnt vmcnt(0)\ns_barrier\ns_cmp_lg_u32 s32, 0\ns_cbranch_scc1 W2SIG\ns_mov_b64 exec, 1\nbuffer_store_byte v8, off, s[24:27], s46 sc1\ns_mov_b64 exec, -1\nW2SIG:"); A.stamp(1)
        for r in range(32): A(f"v_mov_b32 v{W[p]+r}, 0")
        for mt in range(0 if 'W' in os.environ.get('X', '') else 4):
            for j in range(4):
                A(f"s_mov_b32 s38, {14400*(16*mt+j)}")
                A(f"buffer_load_short_d16_hi v{W[p]+8*mt+j}, v{6+p}, s[12:15], s38 offen")
                A(f"buffer_load_short_d16_hi v{W[p]+8*mt+4+j}, v{6+p}, s[16:19], s38 offen")
        A(f"{LS}:")
    A(f"""
    v_cvt_f32_u32 v6, v2
    v_mul_f32 v6, {fhex(1/64)}, v6
    v_lshlrev_b32 v7, 2, v3
    v_cvt_f32_u32 v7, v7
    v_mul_f32 v7, v7, v6
    s_mov_b32 s40, 0x8000
    s_mov_b32 s41, 0x80000000
    """)
    for ks in range(4):
        for j in range(4): A(f"v_fmamk_f32 v{8+j}, v6, {fhex(float(16*ks+j))}, v7")
        for j in range(4): A(f"v_sin_f32 v{12+j}, v{8+j}")
        for j in range(4): A(f"v_cos_f32 v{8+j}, v{8+j}")
        A("s_nop 0")
        for j in range(4): A(f"v_cvt_pk_bf16_f32 v{AM+8*j+ks}, v{8+j}, v{12+j}\nv_cvt_pk_bf16_f32 v{AM+8*j+4+ks}, -v{12+j}, v{8+j}")
    LW = A.label("K2NP")
    A(f"""
    s_lshl_b32 s38, s49, 2
    v_add_u32 v8, s38, v3
    v_cmp_gt_u32 vcc, 14, v8
    v_lshlrev_b32 v9, 4, v2
    s_nop 0
    v_cndmask_b32 v8, 0, v8, vcc
    v_add_u32 v8, v8, v9
    v_lshlrev_b32 v8, 8, v8
    v_add_u32 v26, {WS_F}, v8
    v_lshlrev_b32 v6, 10, v3
    v_lshl_add_u32 v6, v2, 4, v6
    s_lshl_b32 s38, s49, 2
    s_lshr_b32 s39, s32, 2
    s_lshl_b32 s39, s39, 14
    s_add_u32 s38, s38, s39
    v_add_u32 v6, s38, v6
    s_lshl_b32 s38, s32, 12
    v_add_u32 v1, s38, v4
    v_lshlrev_b32 v28, 2, v0
    s_mov_b32 s58, {0 if DRY else 1}
    {'s_branch K2GO' if DRY else ''}
    K2REAL:
    """)
    A.stamp(2)
    A(f"s_cmp_gt_u32 s32, 3\ns_cbranch_scc1 {LW}")
    need_spare(A, 11, 10, 1); poll_issue(A, 9, 28, 24); poll_check(A, 9, 28, 11, 10, 0, 24)
    poll_issue(A, 9, 26); poll_check(A, 9, 26, 0, 0, 0)
    A(f"{LW}:\ns_barrier")
    A.stamp(3)
    def ldx():
        LX = A.label("K2X")
        for p in range(2):
            if p: A(f"s_cmp_eq_u32 s56, 2\ns_cbranch_scc1 {LX}")
            for ks in range(4): A(f"buffer_load_dwordx4 {vr(B[p]+4*ks,4)}, v4, s[20:23], s{52+p} offen offset:{ks*1024} sc1")
        A(f"{LX}:")
    ldx(); A("s_waitcnt vmcnt(0)")
    check(A, list(range(B[0], B[0]+32, 4)), 8, ldx)
    A("K2GO:")
    A.stamp(4)
    LB = A.label("K2BAR"); LSP = A.label("K2SP")
    for p in range(2):
        if p: A(f"s_cmp_eq_u32 s56, 2\ns_cbranch_scc1 {LB}")
        for j in range(4):
            for ks in range(4): A(f"v_mov_b32 v{BP+4*j+ks}, v{B[p]+4*ks+j}")
        def pk(op, d, a, b, c=None, neg=None):
            t = f"v_pk_{op}_f32 {vr(d,2)}, {vr(a,2)}, {vr(b,2)}" + (f", {vr(c,2)}" if c is not None else "")
            if neg: t += f" neg_lo:{neg} neg_hi:{neg}"
            A(t)
        def stage():
            A("s_nop 1")
            for j in (0, 2, 1, 3):
                for c in range(2): A(f"v_mfma_f32_16x16x32_bf16 {vr(PP+8*j+4*c,4)}, {vr(AM+8*j+4*c,4)}, {vr(BP+4*j,4)}, 0")
            A("s_nop 3")
            T = 8
            for e in range(0, 8, 2): pk("add", T+e, PP+e, PP+16+e); pk("add", T+8+e, PP+e, PP+16+e, neg="[0,1]")
            for e in range(0, 8, 2): pk("add", PP+e, PP+8+e, PP+24+e); pk("add", PP+16+e, PP+8+e, PP+24+e, neg="[0,1]")
            for e in range(0, 8, 2): pk("add", Z+e, T+e, PP+e); pk("add", Z+16+e, T+e, PP+e, neg="[0,1]")
            for e in range(0, 4, 2):
                pk("add", Z+8+e, T+8+e, PP+20+e); pk("add", Z+12+e, T+12+e, PP+16+e, neg="[0,1]")
                pk("add", Z+24+e, T+8+e, PP+20+e, neg="[0,1]"); pk("add", Z+28+e, T+12+e, PP+16+e)
        stage()
        for mt in range(4):
            zr = Z+8*mt; zi = zr+4; wr = W[p]+8*mt; wi = wr+4; t = 8 + 8*(mt % 2)
            for e in (0, 2): pk("mul", t+e, zr+e, wr+e); pk("mul", t+4+e, zr+e, wi+e)
            for e in (0, 2): pk("fma", t+e, zi+e, wi+e, t+e, neg="[1,0,0]"); pk("fma", t+4+e, zi+e, wr+e, t+4+e)
            for j in range(4): A(f"v_cvt_pk_bf16_f32 v{BP+4*j+mt}, v{t+j}, -v{t+4+j}")
        stage()
        if p: A(f"s_cmp_eq_u32 s56, 1\ns_cbranch_scc1 {LSP}")
        for mt in range(4):
            for j in range(4):
                A(f"v_cvt_pk_bf16_f32 v{8+j}, v{Z+8*mt+j}, -v{Z+8*mt+4+j}\nds_write_b32 v6, v{8+j} offset:{(16*mt+j)*256 + p*32768}")
    A(f"""
    s_branch {LB}
    {LSP}:
    s_cmp_eq_u32 s58, 0
    s_cbranch_scc1 {LB}
    s_mov_b64 exec, s[68:69]
    """)
    for mt in range(4):
        for j in range(4):
            A(f"v_cvt_pk_bf16_f32 v{8+4*mt+j}, v{Z+8*mt+j}, -v{Z+8*mt+4+j}\ns_add_u32 s39, s55, {(16*mt+j)*32768}\nbuffer_store_dword v{8+4*mt+j}, v245, s[20:23], s39 offen sc1")
    A(f"s_mov_b64 exec, -1\n{LB}:\ns_waitcnt lgkmcnt(0)\ns_barrier")
    A("s_add_u32 s58, s58, 1\ns_cmp_eq_u32 s58, 1\ns_cbranch_scc1 K2REAL")
    A.stamp(5)
    LE = A.label("K2E")
    for p in range(2):
        if p: A(f"s_cmp_ge_u32 s51, 112\ns_cbranch_scc1 {LE}")
        for n in range(4): A(f"ds_read_b128 {vr(AM+16*p+4*n,4)}, v1 offset:{n*1024 + p*32768}")
        for n in range(4):
            A(f"s_waitcnt lgkmcnt({3-n})\nbuffer_store_dwordx4 {vr(AM+16*p+4*n,4)}, v244, s[20:23], s{54+p} offen sc1\ns_add_u32 s{54+p}, s{54+p}, {4*32768}")
    A(f"{LE}:")
    A.stamp(6)
    A.stamp_flush(1, 32)
    A("s_endpgm")
```

```python
import sys, os
sys.path.insert(0, os.path.dirname(__file__))
from common import *
from k1 import gen_k1, K1_LDS
out = sys.argv[1] if len(sys.argv) > 1 else f"cdna_kernels/{NAME}.s"
A = Asm()
n = NAME + "_kernel"
hdr = ["; GFNet spectral filter + GELU MLP, single persistent launch (generated by hand-written generator scripts)",
       f"; @launch grid=(256,1,1) block=(512,1,1) lds={K1_LDS}",
       '.amdgcn_target "amdgcn-amd-amdhsa--gfx950"', ".text"]
v = gen_k1(A, n)
desc = ['.section .rodata,"a"', kdesc(n, v)]
open(out, "w").write("\n".join(hdr + A.L + desc) + "\n")
print("wrote", out, len(A.L), "lines")
```

```python
from common import *
X = os.environ.get('X', 'pa')
PRE = int(os.environ.get('PRE', '4'))
HST = '' if 'S' in X else ' sc1'
from k23 import *
M4 = 'v_mfma_f32_4x4x4_16b_bf16'
SLOT = 24576
L_T1 = 5 * SLOT
L_CST = L_T1 + 28672
L_ST = L_CST + 2048
L_CSW = L_ST + 2048
L_RR = L_CSW + 4096
L_XT = 4 * SLOT + 8192
L_CNT = L_RR + 512
K1_LDS = L_CNT + 64
SE = int(os.environ.get('SE', '2'))
SK = int(os.environ.get('SK', '3'))
HA = int(os.environ.get('HA', '0'))
GC = int(os.environ.get('GC', '30'))
ZH = int(os.environ.get('ZH', '0'))
WK = [int(v) for v in os.environ.get('WK', '0,5').split(',')]
NT = int(os.environ.get('NT', '4'))
NB = int(os.environ.get('NB', '18'))
XS = int(os.environ.get('XS', '18'))
XK = int(os.environ.get('XK', '8'))
XF = 128; ACC0 = 96; ACCD = 112; ACC1 = 80; WF = 64; TF = 48
C0 = -2.0 * math.log2(math.e) * math.sqrt(2.0 / math.pi)
C1 = C0 * 0.044715
SCALE = 2.0 / (2048.0 * 448.0)

def gelu_ops(acc, soff_s, vc0, vc1, vsd, vst, T):
    L = []
    for half in range(2):
        a = acc + half * 8
        L += [f"v_mul_f32 v{T+j}, v{a+j}, v{a+j}" for j in range(8)]
        L += [f"v_fma_f32 v{T+j}, v{T+j}, v{vc1}, v{vc0}" for j in range(8)]
        L += [f"v_mul_f32 v{T+j}, v{a+j}, v{T+j}" for j in range(8)]
        L += [f"v_exp_f32 v{T+j}, v{T+j}" for j in range(8)]
        L += [f"v_fma_f32 v{T+j}, v{T+j}, v{vsd}, v{vsd}" for j in range(8)]
        L += [f"v_rcp_f32 v{T+j}, v{T+j}" for j in range(8)]
        L += [f"v_mul_f32 v{T+j}, v{a+j}, v{T+j}" for j in range(8)]
        P = T + 8 + half * 4
        L += [f"v_cvt_pk_bf16_f32 v{P+j}, v{T+2*j}, v{T+2*j+1}" for j in range(4)]
        L += [f"buffer_store_dwordx4 {vr(P,4)}, v{vst}, s[20:23], s{soff_s} offen offset:{half*1024}{HST}"]
    return L
def gelu_store(A, *a):
    for l in gelu_ops(*a): A(l)

def split_hilo(A, dst, src, t0, t1):
    A(f"v_cvt_pk_bf16_f32 v{t0}, v{src}, v{src}")
    A(f"v_and_b32 v{t0}, 0xffff0000, v{t0}")
    A(f"v_sub_f32 v{t1}, v{src}, v{t0}")
    A(f"v_cvt_pk_bf16_f32 v{dst}, v{t0}, v{t1}")

def gen_k1(A, name):
    kernel_begin(A, name)
    Lend = A.label("K1END"); Lspare = A.label("K1SPARE")
    MF = "v_mfma_f32_32x32x16_bf16"
    if '2' in X: A("s_mov_b32 s88, 0\nK1AGAIN:")
    A.stamp(0)
    A.on = STAMP_PART == 1
    A(f"""
    s_cmp_ge_u32 s2, 256
    s_cbranch_scc1 {Lend}
    s_load_dwordx2 s[4:5], s[0:1], 0
    s_load_dwordx4 s[8:11], s[0:1], 32
    s_load_dwordx2 s[6:7], s[0:1], 48
    s_load_dwordx4 s[28:31], s[0:1], 72
    s_load_dwordx4 s[88:91], s[0:1], 8
    v_lshrrev_b32 v1, 6, v0
    v_and_b32 v0, 63, v0
    s_and_b32 s42, s2, 7
    s_lshr_b32 s43, s2, 3
    v_readfirstlane_b32 s32, v1
    s_mov_b32 s59, 200000
    s_cmp_ge_u32 s43, 28
    s_cbranch_scc1 {Lend if 'w' in X else Lspare}
    s_mul_i32 s33, s43, 37
    s_lshr_b32 s33, s33, 8
    s_mul_i32 s35, s33, 7
    s_sub_u32 s35, s43, s35
    s_lshl_b32 s50, s33, 1
    s_add_u32 s50, s50, s35
    s_sub_u32 s38, s50, 7
    s_cselect_b32 s50, s50, s38
    s_lshr_b32 s34, s42, 1
    s_lshl_b32 s34, s34, 2
    s_add_u32 s34, s34, s33
    s_and_b32 s38, s42, 1
    s_mul_i32 s38, s38, 7
    s_add_u32 s35, s35, s38
    s_and_b32 s36, s32, 3
    s_lshr_b32 s37, s32, 2
    s_mov_b32 s51, s50
    """)
    if 'o' in X: A("s_mov_b32 s50, 0\ns_mov_b32 s51, 0")
    for c in range(7):
        A(f"s_lshl_b32 s{52+c}, s51, 7\ns_mul_i32 s{60+c}, s51, {64*3584}")
        if c < 6: A("s_add_u32 s51, s51, 1\ns_cmp_eq_u32 s51, 7\ns_cselect_b32 s51, 0, s51")
    A(f"""
    v_lshrrev_b32 v4, 3, v0
    s_and_b32 s38, s32, 1
    s_lshl_b32 s38, s38, 4
    v_add_u32 v4, s38, v4
    v_lshrrev_b32 v5, 1, v4
    v_and_b32 v5, {4 if 'n' in X else 7}, v5
    v_and_b32 v6, 7, v0
    v_xor_b32 v5, v5, v6
    v_lshlrev_b32 v5, 4, v5
    v_mul_u32_u24 v4, {896 if 'x' in X else 57344}, v4
    s_lshr_b32 s38, s32, 1
    s_lshl_b32 s39, s34, 2
    s_add_u32 s38, s38, s39
    s_mul_i32 s38, s38, {896*32 if 'x' in X else 896}
    v_add_u32 v4, s38, v4
    v_add_u32 v2, v4, v5
    v_xor_b32 v5, 64, v5
    v_add_u32 v3, v4, v5
    v_add_u32 v3, {896*8 if 'x' in X else 458752}, v3
    v_lshrrev_b32 v4, 3, v0
    v_and_b32 v5, 2, v4
    v_lshlrev_b32 v5, 1, v5
    v_xor_b32 v5, v5, v6
    v_lshlrev_b32 v5, 4, v5
    s_lshl_b32 s38, s32, 3
    v_add_u32 v4, s38, v4
    v_mul_u32_u24 v4, 3584, v4
    s_lshl_b32 s38, s35, 8
    v_add3_u32 v4, v4, v5, s38
    s_lshl_b32 s40, s32, 11
    s_lshl_b32 s41, s32, 10
    v_and_b32 v5, 31, v0
    s_lshl_b32 s38, s35, 7
    s_lshl_b32 s39, s37, 5
    s_add_u32 s38, s38, s39
    v_add_lshl_u32 v7, v5, s38, 1
    """)
    A(f"""
    v_lshrrev_b32 v6, 5, v0
    v_and_b32 v10, 15, v0
    s_lshl_b32 s38, s35, 4
    v_add_u32 v10, s38, v10
    v_bfe_u32 v11, v0, 4, 1
    v_cvt_f32_u32 v12, v11
    v_mul_f32 v12, 0.25, v12
    v_add_u32 v13, s38, v5
    v_cmp_eq_u32 vcc, 16, v13
    s_cmp_eq_u32 s35, 0
    s_cselect_b64 vcc, vcc, 0
    v_mov_b32 v14, 224
    v_cndmask_b32 v10, v10, v14, vcc
    v_cndmask_b32 v12, v12, 0, vcc
    v_cvt_f32_u32 v10, v10
    v_mul_f32 v10, {fhex(1.0/448.0)}, v10
    v_lshlrev_b32 v13, 3, v6
    s_lshl_b32 s38, s36, 4
    v_add_u32 v13, s38, v13
    v_cvt_f32_u32 v13, v13
    v_fma_f32 v13, v13, v10, v12
    v_lshlrev_b32 v29, 4, v0
    v_add_u32 v35, {L_T1}, v29
    v_add_u32 v14, s41, v35
    s_waitcnt lgkmcnt(0)
    """)
    A.srd(12, 4, 1835008)
    A.srd(16, 8, 1605632)
    def dma1(c, slot, q):
        if q == 0: A(f"s_add_u32 m0, s40, {slot*SLOT}\ns_nop 0\nbuffer_load_dwordx4 v2, s[12:15], s{52+c} offen lds")
        if q == 1: A(f"s_add_u32 m0, s40, {slot*SLOT+1024}\ns_nop 0\nbuffer_load_dwordx4 v3, s[12:15], s{52+c} offen lds")
        if q == 2: A(f"s_add_u32 m0, s41, {slot*SLOT+16384}\ns_nop 0\nbuffer_load_dwordx4 v4, s[16:19], s{60+c} offen lds")
    def dma_G(c, slot):
        for q in range(3): dma1(c, slot, q)
    baddr = [2*SLOT, 2*SLOT+8192, 2*SLOT+16384, 3*SLOT, 3*SLOT+8192, 3*SLOT+16384, 4*SLOT]
    def dma_B(c):
        A(f"s_add_u32 m0, s41, {baddr[c]-128}\ns_nop 0\nbuffer_load_dwordx4 v4, s[16:19], s{60+c} offen offset:128 lds")
    def t1gen(i):
        A(f"s_add_u32 s38, s50, s37\ns_add_u32 s38, s38, {2*i}\ns_sub_u32 s39, s38, 7\ns_cselect_b32 s38, s38, s39\ns_lshl_b32 s38, s38, 6\nv_cvt_f32_u32 v27, s38\nv_fma_f32 v27, v27, v10, v13")
        for j in range(8): A(f"v_fmamk_f32 v{16+j}, v10, {fhex(float(j))}, v27")
        for j in range(8): A(f"v_cos_f32 v{16+j}, v{16+j}")
        A("s_nop 0")
        for j in range(4): A(f"v_cvt_pk_bf16_f32 v{24+j}, v{16+2*j}, v{17+2*j}")
        A(f"ds_write_b128 v14, v[24:27] offset:{8192*i}")
    dma_G(0, 0); dma_G(1, 1)
    A.srd(24, 10, 3584)
    t1gen(0); dma_G(2, 2)
    A("buffer_load_ushort v8, v7, s[24:27], 0 offen\nbuffer_load_ushort v9, v7, s[24:27], 0 offen offset:128")
    if 'p' not in X:
        A(f"""
        s_mul_i32 s38, s33, 112
        s_mul_i32 s39, s32, 14
        s_add_u32 s38, s38, s39
        v_min_u32 v15, 13, v0
        v_add_u32 v15, s38, v15
        v_mul_u32_u24 v15, 3584, v15
        s_lshl_b32 s38, s35, 8
        buffer_load_dword v1, v15, s[16:19], s38 offen offset:128
        """)
    t1gen(1)
    for c in range(3, PRE): dma_G(c, c)
    A.srd(20, 30, WS_SIZE)
    A(f"""
    s_lshl_b32 s38, s34, 2
    s_add_u32 s44, s38, s36
    s_mul_i32 s38, s44, 112
    s_lshl_b32 s39, s35, 3
    s_add_u32 s38, s38, s39
    s_lshl_b32 s39, s37, 1
    s_add_u32 s38, s38, s39
    s_lshl_b32 s45, s38, 10
    s_add_u32 s46, s45, 4096
    """)
    def preS(q, d): A(f"buffer_store_dwordx4 {vr(d,4)}, v29, s[20:23], s{45+q//2} offen offset:{q%2*1024} sc1")
    def preU(d):
        A(f"s_lshl_b32 s38, s35, 3\ns_add_u32 s38, s38, s32\ns_mul_i32 s39, s38, 147\ns_lshr_b32 s39, s39, 12\ns_lshl_b32 s39, s39, 2\ns_add_u32 s38, s38, s39\ns_lshl_b32 s39, s34, 7\ns_add_u32 s38, s38, s39\ns_lshl_b32 s38, s38, 10\ns_add_u32 s38, s38, {WS_U}")
        A(f"buffer_store_dwordx4 {vr(d,4)}, v29, s[20:23], s38 offen sc1")
    if SE == 1:
        for q in range(4): A(f"v_mov_b32 v{XF+108+q}, -1")
        for q in range(HA): preS(q, XF+108)
        preU(XF+108)
    if 'f' not in X:
        A(f"s_mul_i32 s38, s34, 14\ns_add_u32 s38, s38, s35\ns_cmp_lt_u32 s32, 4\ns_cbranch_scc1 PFD\ns_cmp_eq_u32 s32, 7\ns_cbranch_scc1 PFD")
        A(f"s_cmp_eq_u32 s32, 6\ns_cbranch_scc1 PF6\ns_mul_i32 s38, s38, {33*128}\nv_min_u32 v15, 32, v0\ns_cmp_eq_u32 s32, 5\ns_cbranch_scc1 PF5")
        A.srd(20, 88, 921600); A("s_branch PFG\nPF5:"); A.srd(20, 90, 921600)
        A(f"s_branch PFG\nPF6:\ns_mul_i32 s38, s38, {56*128}\nv_min_u32 v15, 55, v0"); A.srd(20, 6, 1605632)
        A("PFG:\nv_lshlrev_b32 v15, 7, v15\nbuffer_load_dword v47, v15, s[20:23], s38 offen\ns_branch PFE\nPFD:\nbuffer_load_ushort v47, v7, s[24:27], 0 offen\nPFE:")
    t1gen(2)
    A.srd(20, 30, WS_SIZE)
    A.srd(24, 28, 256)
    A(f"v_mov_b32 v11, {L_CNT}\nv_mov_b32 v12, 0\nv_mov_b32 v15, 0\nds_write2_b32 v11, v12, v15 offset0:0 offset1:1\nds_write2_b32 v11, v12, v15 offset0:2 offset1:3\ns_lshl_b32 s47, s34, 4\ns_add_u32 s47, s47, s35\ns_lshl_b32 s47, s47, 8\ns_add_u32 s47, s47, {WS_F}")
    A(f"""
    v_lshlrev_b32 v28, 2, v0
    v_lshrrev_b32 v11, 1, v5
    v_and_b32 v11, 7, v11
    v_xor_b32 v11, v11, v6
    v_lshlrev_b32 v15, 4, v11
    s_lshl_b32 s38, s36, 12
    v_lshl_add_u32 v11, v5, 7, s38
    """)
    for p in range(4): A(f"v_xor_b32 v12, {p*32}, v15\nv_add_u32 v{30+p}, v11, v12")
    A(f"""
    v_bfe_u32 v15, v0, 2, 2
    v_lshl_add_u32 v11, v6, 3, v15
    v_lshlrev_b32 v11, 7, v11
    v_and_b32 v12, 3, v0
    v_lshlrev_b32 v12, 3, v12
    v_bfe_u32 v7, v0, 4, 1
    v_lshl_add_u32 v12, v7, 5, v12
    s_lshl_b32 s38, s37, 6
    v_add_u32 v12, s38, v12
    v_and_b32 v7, 2, v15
    v_lshlrev_b32 v7, 5, v7
    v_xor_b32 v12, v12, v7
    v_add_u32 v34, v11, v12
    v_mov_b32 v38, 0x3f803f80
    v_mov_b32 v39, 0x3f803f80
    """)
    for p in range(5): A(f"v_add_u32 v{40+p}, 65536, v{30+p}")
    def xa(p, off):  return (30+p, off) if off < 65536 else (40+p, off-65536)
    def wa(off):     return (34, off) if off < 65536 else (44, off-65536)
    def colsum_own(p, d, first):
        lab = A.label()
        A(f"s_cmp_lg_u32 s36, {p}\ns_cbranch_scc1 {lab}")
        for j in range(2): A(f"{M4} {vr(d+4*j,4)}, v[38:39], {vr(WF+4*p+2*j,2)}, {'0' if first else vr(d+4*j,4)}")
        A(f"{lab}:")
    def wread(base, p):
        r, o = wa(base + p*2048)
        A(f"ds_read_b64_tr_b16 {vr(WF+4*p,2)}, v{r} offset:{o}")
        A(f"ds_read_b64_tr_b16 {vr(WF+4*p+2,2)}, v{r} offset:{o+512}")
    def stats_aug():
        A(f"""
        v_lshlrev_b32 v10, 2, v5
        s_lshl_b32 s38, s36, 9
        s_add_u32 s38, s38, {L_ST}
        v_add_u32 v10, s38, v10
        ds_read2_b32 v[12:13], v10 offset0:0 offset1:32
        ds_read2_b32 v[14:15], v10 offset0:64 offset1:96
        s_lshl_b32 s38, s37, 10
        s_add_u32 s38, s38, {L_CSW}
        v_add_u32 v11, s38, v28
        ds_read2st64_b32 v[16:17], v11 offset0:0 offset1:1
        ds_read2st64_b32 v[18:19], v11 offset0:2 offset1:3
        v_cmp_gt_u32 vcc, 32, v0
        v_mov_b32 v22, 0
        v_mov_b32 v23, 0
        v_mov_b32 v25, v8
        v_mov_b32 v26, 0
        v_mov_b32 v27, 0
        s_waitcnt lgkmcnt(2)
        v_add_f32 v12, v12, v13
        v_add_f32 v14, v14, v15
        v_mul_f32 v12, {fhex(1.0/448.0)}, v12
        v_mul_f32 v14, {fhex(1.0/448.0)}, v14
        v_fma_f32 v14, -v12, v12, v14
        v_max_f32 v14, 0, v14
        v_cvt_pk_bf16_f32 v14, v14, v14
        v_and_b32 v14, 0xffff0000, v14
        v_add_f32 v14, {fhex(1e-5)}, v14
        v_cvt_pk_bf16_f32 v14, v14, v14
        v_and_b32 v14, 0xffff0000, v14
        v_sqrt_f32 v14, v14
        v_cvt_pk_bf16_f32 v20, -v12, -v12
        v_cvt_pk_bf16_f32 v14, v14, v14
        v_and_b32 v45, 0xffff0000, v14
        v_rcp_f32 v46, v45
        v_lshrrev_b32 v21, 16, v45
        v_cndmask_b32 v21, 0, v21, vcc
        v_mul_f32 v36, {fhex(C0)}, v46
        v_mul_f32 v37, v46, v46
        v_mul_f32 v37, v37, v46
        v_mul_f32 v37, {fhex(C1)}, v37
        s_waitcnt lgkmcnt(0)
        v_add_f32 v16, v16, v17
        v_add_f32 v18, v18, v19
        v_add_f32 v16, v16, v18
        """)
        split_hilo(A, 24, 16, 17, 18)
        A(f"s_nop 1\n{MF} {vr(ACC0,16)}, v[24:27], v[20:23], {vr(ACC0,16)}")
    def x1addr():
        A(f"""
        v_lshrrev_b32 v10, 4, v0
        s_lshl_b32 s38, s36, 3
        v_add_u32 v10, s38, v10
        v_and_b32 v1, 15, v0
        v_lshlrev_b32 v13, 12, v10
        v_lshl_add_u32 v13, v1, 4, v13
        s_lshl_b32 s48, s35, 17
        s_lshl_b32 s39, s34, 8
        s_add_u32 s48, s48, s39
        s_add_u32 s48, s48, {WS_X1}
        s_add_u32 s49, s48, 16384
        s_add_u32 s51, s39, {WS_X1 + 14*131072}
        """)
    def x1st(q, d):
        if q < 2: A(f"buffer_store_dwordx4 {vr(d,4)}, v13, s[20:23], s{48+q} offen sc1"); return
        LNS2 = A.label("NOSPEC2")
        A(f"s_or_b32 s38, s35, s36\ns_cmp_lg_u32 s38, 0\ns_cbranch_scc1 {LNS2}\ns_mov_b64 exec, 0xffffffff\nbuffer_store_dwordx4 {vr(d,4)}, v13, s[20:23], s51 offen sc1\ns_mov_b64 exec, -1\n{LNS2}:")
    since = [0, 0]
    def phase_b(cg):
        G = gelu_ops(ACC0, 45, 36, 37, 45, 29, 240); gi = 0
        A(f"s_and_b32 s38, s42, 1\ns_mul_i32 s38, s38, 7\ns_sub_u32 s38, s35, s38\ns_mul_i32 s38, s38, 229376\ns_add_u32 s38, s38, {WS_W2P}")
        ksoffs(A, 52, 38)
        wread(baddr[0], 0); wread(baddr[0], 1); wread(baddr[0], 2)
        nw = 0; after = 0
        if cg == 1:
            A('s_cmp_lg_u32 s36, 0\ns_cbranch_scc1 PFF'); poll_check(A, 7, 28, 1, 18, 0, 24)
            A(f'v_mov_b32 v1, 1\nv_mov_b32 v7, {L_CNT+4}\ns_mov_b64 exec, 1\n'+('' if ZH else 'buffer_store_dword v1, off, s[20:23], s47 sc1\n')+f'ds_write_b32 v7, v1\ns_mov_b64 exec, -1\ns_waitcnt lgkmcnt(0)\nPFF:')
        for ks in range(28):
            c, p = divmod(ks, 4)
            n = ks + 3
            if n < 28: wread(baddr[n//4], n % 4)
            A(f"s_waitcnt lgkmcnt({2*min(3, 27-ks)})")
            A(f"{MF} {vr(ACC1,16)}, {vr(WF+4*p,4)}, {vr(XF+4*ks,4)}, {vr(ACC1,16) if ks else '0'}")
            colsum_own(p, ACCD, ks < 4)
            if cg == 1 and ks == XK:
                LSP = A.label("XSPIN")
                x1addr()
                A(f"""
                v_mov_b32 v14, {L_CNT}
                v_mul_u32_u24 v12, 272, v10
                v_lshl_add_u32 v12, v1, 4, v12
                v_add_u32 v12, {L_XT}, v12
                v_mul_u32_u24 v15, 272, v5
                v_add_u32 v15, {L_XT+256}, v15
                {LSP}:
                ds_read_b32 v10, v14
                s_waitcnt lgkmcnt(0)
                v_readfirstlane_b32 s38, v10
                s_cmp_lt_u32 s38, 4
                s_cbranch_scc1 {LSP}
                ds_read_b128 {vr(TF,4)}, v12
                ds_read_b128 {vr(TF+4,4)}, v12 offset:{4*272}
                ds_read_b128 {vr(TF+8,4)}, v15
                """)
            if cg == 1 and ks == XK + 1:
                A("s_waitcnt lgkmcnt(2)")
                for q in range(3): x1st(q, TF+4*q)
                A.stamp(1)
            if cg == 1 and ks == XS:
                A(f"s_cmp_lg_u32 s36, 0\ns_cbranch_scc1 HP1\nv_min_u32 v1, 13, v0\ns_lshl_b32 s38, s34, 12\ns_add_u32 s38, s38, {WS_F}\nv_lshl_add_u32 v1, v1, 8, s38")
                poll_issue(A, 7, 1); A("HP1:"); after = 0
            if ks == WK[cg]:
                LSP = A.label("WSPIN")
                A(f"v_mov_b32 v14, {L_CNT+4}\n{LSP}:\nds_read_b32 v15, v14\ns_waitcnt lgkmcnt(0)\nv_readfirstlane_b32 s38, v15\ns_cmp_eq_u32 s38, 0\ns_cbranch_scc1 {LSP}")
            while ks >= WK[cg] and nw < (ks+1-WK[cg])*NB//(28-WK[cg]): frag_ld(A, XF+4*nw, 52, nw//2, nw % 2); nw += 1; after += 1; since[cg] += 1
            if ks >= 2:
                cost = 0
                while gi < len(G) and cost < GC:
                    A(G[gi]); cost += 8 if ("exp" in G[gi] or "rcp" in G[gi]) else 4; after += "store" in G[gi]; since[cg] *= "store" not in G[gi]; gi += 1
                    if gi == len(G): print('G done at ks', ks)
        while gi < len(G): A(G[gi]); after += "store" in G[gi]; since[cg] *= "store" not in G[gi]; gi += 1
        if cg == 1:
            twgen(A, 0, TF); twgen(A, 1, TF+4)
            A('s_cmp_lg_u32 s36, 0\ns_cbranch_scc1 HP2'); poll_check(A, 7, 1, 0, 0, after); A('HP2:'); A.stamp(2)
        A(f"""
        s_lshl_b32 s38, s32, 8
        s_add_u32 s38, s38, {L_CSW+2048}
        v_add_u32 v10, s38, v28
        s_nop 2
        v_add_f32 v12, v{ACCD}, v{ACCD+4}
        ds_write_b32 v10, v12
        s_waitcnt lgkmcnt(0)
        s_barrier
        """)
    def aug_b():
        A(f"""
        v_add_u32 v11, {2048}, v11
        ds_read2st64_b32 v[16:17], v11 offset0:0 offset1:1
        ds_read2st64_b32 v[18:19], v11 offset0:2 offset1:3
        v_mov_b32 v25, v9
        s_waitcnt lgkmcnt(0)
        v_add_f32 v16, v16, v17
        v_add_f32 v18, v18, v19
        v_add_f32 v16, v16, v18
        """)
        split_hilo(A, 24, 16, 17, 18)
        A(f"s_nop 1\n{MF} {vr(ACC1,16)}, v[24:27], v[20:23], {vr(ACC1,16)}")
    LB = A.label("CG1")
    A(f"s_cmp_eq_u32 s37, 1\ns_cbranch_scc1 {LB}")
    for cg in range(2):
        if cg == 1: A(f"{LB}:")
        if cg == 1 and 'a' in X: A("s_setprio 1")
        if cg == 0:
            t1gen(3)
            A(f"""
            v_cvt_f32_u32 v10, v5
            v_mul_f32 v10, {fhex(1.0/2048.0)}, v10
            v_lshlrev_b32 v11, 8, v6
            v_add_u32 v11, s44, v11
            v_cvt_f32_u32 v11, v11
            v_mul_f32 v11, v11, v10
            """)
            for kk in range(2):
                for i in range(8): A(f"v_fmamk_f32 v{240+i}, v10, {fhex(float(64*(16*kk+8*(i//4)+i%4)))}, v11")
                for i in range(8): A(f"v_sin_f32 v{248+i}, v{240+i}")
                for i in range(8): A(f"v_cos_f32 v{240+i}, v{240+i}")
                A("s_nop 0")
                for i in range(4): A(f"v_cvt_pk_bf16_f32 v{ACC1+4*kk+i}, v{240+2*i}, v{241+2*i}")
                for i in range(4): A(f"v_cvt_pk_bf16_f32 v{ACC1+8+4*kk+i}, v{248+2*i}, v{249+2*i}")
        per = 4 if cg == 0 else 3
        def reads(c, ps):
            if 'r' in X: return
            for p in ps:
                ks = 4*c + p; slot = c % 5
                r, o = xa(p, slot*SLOT)
                A(f"ds_read_b128 {vr(XF+4*ks,4)}, v{r} offset:{o}")
                wread(slot*SLOT + 16384, p)
                if cg == 0: A(f"ds_read_b128 {vr(TF+4*p,4)}, v35 offset:{ks*1024}")
        def comp(c, p, wait):
            ks = 4*c + p
            A(f"s_waitcnt lgkmcnt({wait})")
            A(f"{MF} {vr(ACC0,16)}, {vr(WF+4*p,4)}, {vr(XF+4*ks,4)}, {vr(ACC0,16) if ks else '0'}")
            if cg == 0:
                A(f"{MF} {vr(ACCD,16)}, {vr(XF+4*ks,4)}, {vr(TF+4*p,4)}, {vr(ACCD,16) if ks else '0'}")
            elif 'v' in X:
                for j in range(4): A(f"v_lshlrev_b32 v{TF+2*j}, 16, v{XF+4*ks+j}\nv_and_b32 v{TF+1+2*j}, 0xffff0000, v{XF+4*ks+j}")
                for j in range(4): A(f"v_add_f32 v{TF+8}, v{TF+8}, v{TF+2*j}\nv_fmac_f32 v{TF+9}, v{TF+2*j}, v{TF+2*j}\nv_add_f32 v{TF+10}, v{TF+10}, v{TF+2*j+1}\nv_fmac_f32 v{TF+11}, v{TF+2*j+1}, v{TF+2*j+1}")
            else:
                for j in range(2):
                    x2 = vr(XF+4*ks+2*j, 2)
                    A(f"{M4} {vr(TF+8*j,4)}, {x2}, {x2}, {vr(TF+8*j,4) if ks else '0'}")
                    A(f"{M4} {vr(TF+8*j+4,4)}, v[38:39], {x2}, {vr(TF+8*j+4,4) if ks else '0'}")
            colsum_own(p, 240, c == 0)
            if SE == 2 and ks == SK: prefill()
            for _ in range(2):
                if queue and queue[0][3] <= 4*c + p:
                    t = queue.pop(0); issued.append(t[:2])
                    if 'd' in X: issued.pop()
                    elif t[0] == 'G': dma1(t[1], t[1] % 5, t[2])
                    else: dma_B(t[1])
        queue = [('G', c, q, 0 if c < 5 else 4*(c-5)+2) for c in range(PRE, 7) for q in range(3)] + [('B', c, 0, 4*(2+c//3)+2) for c in range(7)]
        for q in range(4): A(f"v_mov_b32 v{16+q}, -1")
        issued = [('G', c) for c in range(3) for q in range(3)] + [('b', 0)] * (2 if 'p' in X else 3) + [('G', c) for c in range(3, PRE) for q in range(3)] + [('b', 0)] * (('f' not in X) + (HA+1)*(SE == 1))
        ppos = [None]; posted = [False]
        if cg == 1: x1addr()
        def prefill():
            if SE != 1:
                for q in range(HA): preS(q, 16)
                preU(16); issued.extend([('b', 0)] * (HA+1))
            if cg == 1:
                for q in range(3): x1st(q, 16)
                issued.extend([('b', 0)] * 2)
            else:
                A(f"s_or_b32 s38, s35, s36\ns_cmp_lg_u32 s38, 0\ns_cbranch_scc1 NOV\nv_lshrrev_b32 v12, 3, v5\nv_and_b32 v15, 7, v5\nv_lshlrev_b32 v12, 15, v12\nv_lshl_add_u32 v12, v15, 9, v12\ns_lshl_b32 s38, s34, 17\ns_add_u32 s38, s38, {WS_U+7*4096}\nbuffer_store_dwordx4 v[16:19], v12, s[20:23], s38 offen sc1\nNOV:")
            ppos[0] = len(issued)
        def post(wait):
            posted[0] = True
            if cg == 0 or not ZH: return
            A("s_cmp_lg_u32 s36, 0\ns_cbranch_scc1 ZP2"); poll_check(A, 7, 28, 1, 12, wait, 24)
            A("v_mov_b32 v1, 1\ns_mov_b64 exec, 1\nbuffer_store_dword v1, off, s[20:23], s47 sc1\ns_mov_b64 exec, -1\nZP2:")
        if SE < 2: prefill()
        def vm(c): return 0 if ('G', c) not in issued else len(issued) - 1 - max(i for i, t in enumerate(issued) if t == ('G', c))
        if cg == 0: A.stamp(1)
        A(f"s_waitcnt vmcnt({vm(0)}) lgkmcnt(0)\ns_barrier")
        if cg == 0: A.stamp(2)
        reads(0, range(4))
        for c in range(7):
            comp(c, 0, 3*per)
            comp(c, 1, 2*per)
            if c < 6:
                A(f"s_waitcnt vmcnt({vm(c+1)}) lgkmcnt(0)\ns_barrier")
                reads(c+1, (0, 1))
                if cg == 1 and c == 0 and ZH:
                    A("s_cmp_lg_u32 s36, 0\ns_cbranch_scc1 ZP1\ns_lshl_b32 s38, s34, 2\ns_lshr_b32 s39, s35, 2\ns_add_u32 s38, s38, s39\nv_cmp_eq_u32 vcc, s38, v0")
                    poll_issue(A, 7, 28, 24); A("s_nop 0\nv_cndmask_b32 v1, 0, 1, vcc\nZP1:")
                if c == 0: zpos = len(issued)
                if not posted[0] and ppos[0] is not None and len(issued) - 1 - vm(c+1) >= ppos[0] and c > 0: post(len(issued) - zpos)
                comp(c, 2, 15)
                comp(c, 3, 15)
                reads(c+1, (2, 3))
            else:
                assert posted[0] or not ZH
                if cg == 1: A('s_cmp_lg_u32 s36, 0\ns_cbranch_scc1 W2P1'); poll_issue(A, 7, 28, 24); need_spare(A, 1, 18, 1); A('W2P1:')
                comp(c, 2, per); comp(c, 3, 0)
        if cg == 1:
            A(f"""
            s_lshl_b32 s38, s36, 9
            s_add_u32 s38, s38, {L_ST}
            v_add_u32 v10, s38, v28
            v_and_b32 v12, 1, v0
            v_cmp_eq_u32 vcc, 1, v12
            v_and_b32 v12, 2, v0
            v_cmp_eq_u32 s[48:49], 2, v12
            v_add_f32 v36, v{TF+4}, v{TF+12}
            """)
            for j in range(4): A(f"v_add_f32 v{TF+j}, v{TF+j}, v{TF+8+j}")
            A(f"""
            v_cndmask_b32 v12, v{TF}, v{TF+1}, vcc
            v_cndmask_b32 v13, v{TF+2}, v{TF+3}, vcc
            v_cndmask_b32 v37, v12, v13, s[48:49]
            ds_write2st64_b32 v10, v36, v37 offset0:0 offset1:1
            """)
        A(f"""
        s_lshl_b32 s38, s32, 8
        s_add_u32 s38, s38, {L_CSW}
        v_add_u32 v10, s38, v28
        s_nop 2
        v_add_f32 v12, v240, v244
        ds_write_b32 v10, v12
        """)
        A("s_waitcnt vmcnt(0) lgkmcnt(0)\ns_barrier")
        A.stamp(3)
        stats_aug()
        if cg == 0:
            A(f"""
            v_mul_f32 v13, {fhex(SCALE)}, v46
            s_lshl_b32 s38, s36, 7
            s_add_u32 s38, s38, {L_RR}
            v_lshl_add_u32 v10, v5, 2, s38
            ds_write_b32 v10, v13
            v_lshl_add_u32 v10, v6, 4, s38
            ds_read_b128 v[{TF}:{TF+3}], v10
            ds_read_b128 v[{TF+4}:{TF+7}], v10 offset:32
            ds_read_b128 v[{TF+8}:{TF+11}], v10 offset:64
            ds_read_b128 v[{TF+12}:{TF+15}], v10 offset:96
            v_or_b32 v12, s35, v0
            v_cmp_eq_u32 vcc, 0, v12
            v_mov_b32 v12, 0x43e0
            v_mov_b32 v17, 0
            v_cndmask_b32 v16, 0, v12, vcc
            v_mov_b32 v18, 0
            v_mov_b32 v19, 0
            v_mul_u32_u24 v10, 272, v5
            v_lshl_add_u32 v10, v6, 6, v10
            {MF} {vr(ACCD,16)}, v[20:23], v[16:19], {vr(ACCD,16)}
            s_nop 0
            s_lshl_b32 s38, s36, 2
            s_add_u32 s38, s38, {L_XT}
            v_add_u32 v10, s38, v10
            s_nop 7
            s_waitcnt lgkmcnt(0)
            """)
            for j in range(16): A(f"v_mul_f32 v{ACCD+j}, v{ACCD+j}, v{TF+j}")
            for j in range(8): A(f"v_cvt_pk_bf16_f32 v{12+j}, v{ACCD+2*j}, v{ACCD+2*j+1}")
            A(f"""
            s_nop 1
            {MF} {vr(TF,16)}, v[12:15], {vr(ACC1,4)}, 0
            {MF} {vr(ACCD,16)}, v[12:15], {vr(ACC1+8,4)}, 0
            {MF} {vr(TF,16)}, v[16:19], {vr(ACC1+4,4)}, {vr(TF,16)}
            {MF} {vr(ACCD,16)}, v[16:19], {vr(ACC1+12,4)}, {vr(ACCD,16)}
            """)
            A("s_nop 7\ns_nop 3")
            for j in range(8):
                A(f"v_add_f32 v{240+j}, v{TF+j}, v{ACCD+8+j}")
                A(f"v_sub_f32 v{12+j}, v{TF+8+j}, v{ACCD+j}")
            LNS = A.label("NOSPEC")
            A(f"""
            s_cmp_lg_u32 s35, 0
            s_cbranch_scc1 {LNS}
            s_mov_b64 exec, 0xffffffff
            v_mul_f32 v240, 0.5, v{TF}
            v_mul_f32 v12, -0.5, v{ACCD}
            v_mul_f32 v1, 0.5, v{TF+8}
            v_mul_f32 v7, -0.5, v{ACCD+8}
            v_cvt_pk_bf16_f32 v1, v1, v7
            ds_write_b32 v10, v1 offset:256
            s_mov_b64 exec, -1
            {LNS}:
            """)
            for j in range(8):
                A(f"v_cvt_pk_bf16_f32 v{240+j}, v{240+j}, v{12+j}")
                A(f"ds_write_b32 v10, v{240+j} offset:{(8*(j//4)+j%4)*16}")
            A(f"v_mov_b32 v12, {L_CNT}\nv_mov_b32 v13, 1\ns_mov_b64 exec, 1\ns_waitcnt lgkmcnt(0)\nds_add_u32 v12, v13\ns_mov_b64 exec, -1\ns_waitcnt lgkmcnt(0)")
        A.stamp(4)
        phase_b(cg)
        if cg == 0: A("s_branch K1TAIL")
    A("K1TAIL:")
    A.stamp(5)
    aug_b()
    for nw in range(NB, NB+NT): frag_ld(A, XF+4*nw, 52, nw//2, nw % 2)
    A("s_nop 7\ns_nop 3")
    G = gelu_ops(ACC1, 46, 36, 37, 45, 29, 240); GS = int(os.environ.get('GS', '30'))
    for g in G[:GS]: A(g)
    if HA == 0: signal(A, L_CNT+8, 8, 1, min(since) + NT + sum('store' in g for g in G[:GS]), 10, 11)
    PG = len(G) - int(os.environ.get('PG', '1'))
    assert GS <= PG and PG > 61
    for g in G[GS:PG]: A(g)
    pollA(A)
    for g in G[PG:]: A(g)
    A.stamp(6)
    gen_k3p(A, L_CNT, NB+NT, HA)
    A(f"{Lspare}:")
    A(f"""
    s_sub_u32 s48, s43, 28
    s_lshl_b32 s48, s48, 3
    s_add_u32 s48, s48, s42
    s_lshr_b32 s47, s48, 1
    s_lshl_b32 s47, s47, 4
    s_and_b32 s33, s48, 1
    s_add_u32 s47, s47, s33
    s_add_u32 s46, s47, 14
    s_lshl_b32 s47, s46, 8
    s_add_u32 s47, s47, {WS_F}
    s_waitcnt lgkmcnt(0)
    """)
    A.srd(12, 6, 1605632)
    A.srd(20, 30, WS_SIZE)
    A.srd(24, 28, 256)
    def w2code():
        A(f"""
        s_lshl_b32 s33, s48, 3
        s_add_u32 s33, s33, s32
        v_lshrrev_b32 v92, 5, v0
        v_and_b32 v93, 31, v0
        v_mul_u32_u24 v92, 3584, v92
        v_lshl_add_u32 v92, v93, 2, v92
        v_mov_b32 v90, 0x05040100
        v_mov_b32 v91, 0x07060302
        v_add_u32 v93, 7168, v92
        v_mov_b32 v248, 0
        v_mov_b32 v249, 0
        v_mov_b32 v250, 0
        v_mov_b32 v251, 0
        s_lshl_b32 s38, s33, 10
        s_add_u32 s38, s38, {WS_F}
        buffer_store_dwordx4 v[248:251], v4, s[20:23], s38 offen sc1
        """)
        for i in (3, 0, 1, 2):
            if i == 3: A("s_cmp_ge_u32 s33, 16\ns_cbranch_scc1 W2L0")
            A(f"s_add_u32 s34, s33, {256*i}\ns_mul_hi_u32 s35, s34, {(2**32+6)//7}\ns_mul_i32 s36, s35, 7\ns_sub_u32 s36, s34, s36")
            A(f"s_mul_i32 s37, s35, 14336\ns_lshl_b32 s38, s36, 7\ns_add_u32 s37, s37, s38")
            A(f"s_mul_i32 s38, s36, 224\ns_add_u32 s38, s38, s35\ns_lshl_b32 s38, s38, 10\ns_add_u32 s{60+2*i}, s38, {WS_W2P}\ns_add_u32 s{61+2*i}, s38, {WS_W2P+114688}")
            for j in range(8):
                A(f"buffer_load_dword v{8+8*i+j}, v{92+j//4}, s[12:15], s37 offen offset:{896*(j%4)}")
            if i == 3: A("W2L0:")
        for i in range(4):
            if i == 3: A(f"s_cmp_ge_u32 s33, 16\ns_cbranch_scc1 W2DONE")
            else: A(f"s_waitcnt vmcnt({8*(2-i)+2*i})")
            for c in range(2):
                for j in range(4): A(f"v_perm_b32 v{40+8*i+4*c+j}, v{8+8*i+2*j+1}, v{8+8*i+2*j}, v{90+c}")
                A(f"buffer_store_dwordx4 {vr(40+8*i+4*c,4)}, v4, s[20:23], s{60+2*i+c} offen sc1")
        A("W2DONE:")
    gen_k2p(A, w2code)
    A(f"{Lend}:\ns_endpgm")
    return 256
```

```python
from common import *
L3_TW = 131072
MF = "v_mfma_f32_32x32x16_bf16"
TWO = int(os.environ.get('TWO', '0'))
LSC = os.environ.get('LSC', '')
HSC = ' sc1'
DRY = int(os.environ.get('DRY', '0'))
SLP = int(os.environ.get('SLP', '2'))
def poll_issue(A, vP, vL4, srd=20): A(f"buffer_load_dword v{vP}, v{vL4}, s[{srd}:{srd+3}], 0 offen sc1")
def poll_check(A, vP, vL4, vNeed, vT, wait, srd=20):
    L = A.label("PL"); OK = A.label("POK")
    A(f"""
    s_waitcnt vmcnt({wait})
    {L}:
    {f'v_and_b32 v{vT}, v{vP}, v{vNeed}' if srd == 24 else ''}
    {f'v_cmp_ne_u32 vcc, v{vT}, v{vNeed}' if srd == 24 else f'v_cmp_ne_u32 vcc, 1, v{vP}'}
    s_nop 1
    s_cbranch_vccz {OK}
    s_sub_u32 s59, s59, 1
    s_cbranch_scc1 {OK}
    s_sleep {SLP}
    buffer_load_dword v{vP}, v{vL4}, s[{srd}:{srd+3}], 0 offen sc1
    s_waitcnt vmcnt(0)
    s_branch {L}
    {OK}:
    """)
def need_spare(A, vNeed, vT, lvl):
    A(f"v_and_b32 v{vT}, 3, v0\nv_cmp_eq_u32 vcc, 3, v{vT}\nv_mov_b32 v{vT}, {lvl*0x01010000:#x}\ns_nop 0\nv_cndmask_b32 v{vNeed}, 0, v{vT}, vcc")
def signal(A, cnt_addr, n, val, wait, t0, t1):
    L = A.label("SG")
    A(f"""
    v_mov_b32 v{t0}, {cnt_addr}
    v_mov_b32 v{t1}, 1
    s_mov_b64 exec, 1
    s_waitcnt vmcnt({wait})
    ds_add_rtn_u32 v{t1}, v{t0}, v{t1}
    v_mov_b32 v{t0}, 1
    s_add_u32 s68, s47, {val*65536}
    s_waitcnt lgkmcnt(0)
    v_readfirstlane_b32 s67, v{t1}
    s_cmp_lg_u32 s67, {n-1}
    s_cbranch_scc1 {L}
    buffer_store_dword v{t0}, off, s[20:23], s68 sc1
    {L}:
    s_mov_b64 exec, -1
    """)
WA = int(os.environ.get('WA', '0'))
def check(A, regs, t, reload):
    L = A.label("CK"); OK = A.label("CKOK")
    A(f"{L}:\nv_max_u32 v{t}, v{regs[0]}, v{regs[1]}")
    for i in range(2, len(regs), 2): A(f"v_max3_u32 v{t}, v{t}, v{regs[i]}, v{regs[i+1]}")
    A(f"v_cmp_eq_u32 vcc, -1, v{t}\ns_nop 1\ns_cbranch_vccz {OK}\ns_sub_u32 s59, s59, 1\ns_cbranch_scc1 {OK}\ns_sleep {SLP}")
    reload()
    A(f"s_waitcnt vmcnt(0)\ns_branch {L}\n{OK}:")
def twgen(A, r, T):
    A(f"""
    s_and_b32 s38, s42, 1
    s_lshl_b32 s39, s34, 1
    s_add_u32 s38, s38, s39
    s_lshl_b32 s38, s38, 1
    s_add_u32 s38, s38, {r}
    v_lshl_add_u32 v{T}, v5, 6, s38
    s_lshl_b32 s39, s36, 3
    v_lshl_add_u32 v{T+1}, v6, 2, s39
    v_cvt_f32_u32 v{T}, v{T}
    v_cvt_f32_u32 v{T+1}, v{T+1}
    v_mul_f32 v{T}, {fhex(1/2048)}, v{T}
    v_mul_f32 v{T+1}, v{T+1}, v{T}
    """)
    for j in range(4): A(f"v_fmamk_f32 v{12+j}, v{T}, {fhex(float(j))}, v{T+1}")
    for j in range(4): A(f"v_sin_f32 v{16+j}, v{12+j}")
    for j in range(4): A(f"v_cos_f32 v{12+j}, v{12+j}")
    A(f"s_lshl_b32 s38, s36, 11\ns_add_u32 s38, s38, {L3_TW + r*8192}\nv_add_u32 v10, s38, v29")
    for j in range(4): A(f"v_cvt_pk_bf16_f32 v{T+j}, v{12+j}, -v{16+j}")
    for j in range(4): A(f"v_cvt_pk_bf16_f32 v{12+j}, v{16+j}, v{12+j}")
    A(f"ds_write_b128 v10, {vr(T,4)}\nds_write_b128 v10, v[12:15] offset:1024")
def ksoffs(A, d, base):
    A("s_mul_i32 s67, s32, 7")
    for i in range(7):
        A(f"s_lshr_b32 s{d+i}, s67, 2\ns_lshl_b32 s{d+i}, s{d+i}, 2\ns_add_u32 s{d+i}, s{d+i}, s67\ns_lshl_b32 s{d+i}, s{d+i}, 10\ns_add_u32 s{d+i}, s{d+i}, s{base}\ns_add_u32 s67, s67, 1")
def frag_ld(A, dst, d, st, c, va=29, LSC=LSC):
    k = (4096 if st >= 7 else 0) + c*114688
    if k: A(f"s_add_u32 s67, s{d+st%7}, {k}")
    A(f"buffer_load_dwordx4 {vr(dst,4)}, v{va}, s[20:23], s{67 if k else d+st%7} offen{LSC}")

def pollA(A):
    A(f"""
    s_mul_i32 s38, s32, 7
    s_add_u32 s67, s38, 6
    s_lshr_b32 s38, s38, 2
    s_lshr_b32 s67, s67, 2
    v_add_u32 v14, s38, v0
    v_min_u32 v14, s67, v14
    s_lshl_b32 s38, s34, 12
    s_add_u32 s38, s38, {WS_F + 65536}
    v_lshl_add_u32 v14, v14, 8, s38
    """)
    poll_issue(A, 3, 14)
def gen_k3p(A, L_CNT, NB, HA):
    A.on = STAMP_PART == 3
    W2 = 128; ACC = 64; RING = [16, 24, 32, 40, 48, 56, 240, 248]
    A(f"""
    s_setprio 0
    s_load_dwordx4 s[8:11], s[0:1], 56
    s_and_b32 s38, s42, 1
    s_mul_i32 s39, s38, 7
    s_sub_u32 s35, s35, s39
    s_lshl_b32 s33, s34, 1
    s_add_u32 s33, s33, s38
    s_lshl_b32 s33, s33, 1
    s_mul_i32 s39, s33, 114688
    """)
    ksoffs(A, 60, 39)
    A(f"v_add_u32 v1, {L3_TW}, v29\nv_mov_b32 v15, v29")
    U = [160, 176]; TW = [192, 16]; T3 = 128; Y = 224; XB = 48
    def t3(g):
        c, a = divmod(g, 4); d = T3 + 4*g
        if a == 0:
            A(f"""
            s_lshl_b32 s38, s35, 6
            s_add_u32 s38, s38, {c}
            v_lshl_add_u32 v2, v5, 1, s38
            v_cvt_f32_u32 v2, v2
            s_lshl_b32 s38, s32, 5
            v_lshl_add_u32 v4, v6, 2, s38
            v_cvt_f32_u32 v4, v4
            v_mul_f32 v2, {fhex(1/448)}, v2
            v_mul_f32 v4, v4, v2
            """)
        for j in range(4): A(f"v_fmamk_f32 v{d+j}, v2, {fhex(float(8*a+j))}, v4")
        for j in range(4): A(f"v_sin_f32 v{9+j}, v{d+j}")
        for j in range(4): A(f"v_cos_f32 v{d+j}, v{d+j}")
        A("s_nop 0")
        for j in range(4): A(f"v_cvt_pk_bf16_f32 v{d+j}, v{d+j}, -v{9+j}")
    A.stamp(1)
    UF = [[160, 164, 168, 172], [176, 180, 240, 244]]
    Q = []
    nw = [NB]
    def ld(st, q=True):
        while q and nw[0] < min(28, 2*st+2+WA): frag_ld(A, W2+4*nw[0], 52, nw[0]//2, nw[0] % 2, 15); nw[0] += 1; Q.append(('w', 0))
        for r in range(2):
            frag_ld(A, RING[st % 8] + 4*r, 60, st, r, 15, HSC if (HA and st < 7) else '')
            if q: Q.append(('h', st))
    def ldu(r, q=True):
        for ks in range(4):
            A(f"buffer_load_dwordx4 {vr(UF[r][ks],4)}, v8, s[20:23], s{44+r} offen offset:{ks*1024} sc1")
            if q: Q.append(('u', r))
    def wait(tag): return len(Q) - 1 - max(i for i, t in enumerate(Q) if t == tag)
    assert HA == 0
    while nw[0] < 28: frag_ld(A, W2+4*nw[0], 52, nw[0]//2, nw[0] % 2, 15); nw[0] += 1; Q.append(('w', 0))
    A(f"s_mov_b32 s69, 0\ns_waitcnt vmcnt({len(Q)+1})\nv_cmp_ne_u32 vcc, 1, v3\ns_nop 1\ns_cbranch_vccz AFAST")
    poll_issue(A, 3, 14)
    signal(A, L_CNT+12, 8, 2, len(Q)+1, 10, 11)
    poll_check(A, 3, 14, 0, 0, 0)
    A("s_mov_b32 s69, 1\nAFAST:")
    for st in range(7): ld(st)
    A("s_cmp_lg_u32 s69, 0\ns_cbranch_scc1 ASLOW")
    signal(A, L_CNT+12, 8, 2, len(Q), 10, 11)
    A("ASLOW:")
    A("v_add_u32 v14, 65536, v14")
    TE = int(os.environ.get('TE', '0'))
    nxt = 7; FS = int(os.environ.get('FS', '0')); FC = int(os.environ.get('FC', '2'))
    A.stamp(2)
    A('s_waitcnt lgkmcnt(0)')
    A.srd(16, 8, 896); A.srd(4, 10, 1835008)
    A(f"""
    v_cmp_ne_u32 vcc, 0, v5
    s_cmp_eq_u32 s32, 7
    s_cselect_b64 vcc, vcc, 0
    v_mov_b32 v8, 0x80000000
    s_lshl_b32 s44, s33, 15
    v_cndmask_b32 v8, v15, v8, vcc
    s_lshl_b32 s38, s32, 12
    s_add_u32 s44, s44, s38
    s_add_u32 s44, s44, {WS_U}
    s_add_u32 s45, s44, 32768
    """)
    def acc(r, c): return ACC + 32*r + 16*c
    T3S = [3, 4, 4, 5, 5, 6, 7, 8]
    DS = int(os.environ.get('DS', '10')); TWL = [200, 204, 208, 212, 32, 36, 248, 252]; YY = [184, 16]; XB = 200
    def twrd(r):
        for q in range(8): A(f"ds_read_b128 {vr(TWL[q],4)}, v1 offset:{r*8192+q*1024}")
    def dft():
        twrd(0)
        for r in range(2):
            A(f"s_waitcnt vmcnt({wait(('u', r))})")
            check(A, [UF[r][j//4]+j%4 for j in range(16)], 3, lambda: ldu(r, False))
            for ks in range(4):
                A(f"s_waitcnt lgkmcnt({6-2*ks})")
                for c in range(2):
                    A(f"{MF} {vr(YY[c],16)}, {vr(UF[r][ks],4)}, {vr(TWL[2*ks+c],4)}, {vr(YY[c],16) if ks else '0'}")
            if r == 0: twrd(1); A("s_nop 7")
            else:
                A(f"buffer_load_dwordx4 {vr(XB,4)}, v12, s[12:15], 0 offen\nbuffer_load_dwordx4 {vr(XB+4,4)}, v13, s[16:19], 0 offen\ns_nop 7\ns_nop 3"); Q.extend([('x', 0)]*2)
            for j in range(16): A(f"v_cvt_pk_bf16_f32 v{UF[r][j//4]+j%4}, v{YY[0]+j}, v{YY[1]+j}")
            A("s_nop 1")
            for a_ in range(4):
                for c in range(2):
                    a = acc(r, c)
                    A(f"{MF} {vr(a,16)}, {vr(T3+16*c+4*a_,4)}, {vr(UF[r][a_],4)}, {vr(a,16)}")
    PS = int(os.environ.get('PS', '3')); PC = int(os.environ.get('PC', '7'))
    for st in range(14):
        sl = RING[st % 8]
        A(f"s_waitcnt vmcnt({wait(('h', st))})")
        if HA and st < 7: check(A, [sl, sl+4], 3, lambda: ld(st, False))
        if st == 0: A.stamp(3)
        for r in range(2):
            for c in range(2):
                a = acc(r, c)
                A(f"{MF} {vr(a,16)}, {vr(W2+8*st+4*c,4)}, {vr(sl+4*r,4)}, {vr(a,16) if st else '0'}")
        if st == FS: poll_issue(A, 7, 14); Q.append(('p', 0))
        if st == PC: ldu(0); ldu(1)
        if st == FC:
            for g in range(8):
                if T3S[g] <= st + TE and T3S[g] >= st >= 3: t3(g); T3S[g] = -1
            poll_check(A, 7, 14, 0, 0, wait(('p', 0)))
        while st >= FC and nxt <= min(13 if st >= PC else DS, st+8): ld(nxt); nxt += 1
        for g in range(8):
            if T3S[g] == st: t3(g)
        if st == 9:
            A(f"""
    v_and_b32 v9, 15, v5
    v_xor_b32 v9, v9, v6
    v_lshlrev_b32 v9, 4, v9
    v_lshl_add_u32 v9, v5, 8, v9
    s_lshl_b32 s38, s32, 14
    v_add_u32 v9, s38, v9
    s_lshl_b32 s38, s32, 3
    v_lshrrev_b32 v10, 3, v0
    v_add_u32 v10, s38, v10
    v_and_b32 v11, 7, v0
    v_and_b32 v12, 31, v10
    v_lshrrev_b32 v13, 5, v10
    v_lshl_add_u32 v12, v12, 6, v13
    v_add_u32 v12, s33, v12
    v_mul_u32_u24 v12, 896, v12
    s_lshl_b32 s38, s35, 7
    v_lshl_add_u32 v13, v11, 4, s38
    v_add_u32 v12, v12, v13
    v_and_b32 v7, 15, v10
    v_xor_b32 v11, v11, v7
    v_lshlrev_b32 v11, 4, v11
    v_lshl_add_u32 v10, v10, 8, v11
            """)
        if st == DS: dft()
    A.stamp(4)
    for q in range(1, 8): A(f"v_xor_b32 v{16+q}, {q*32}, v9")
    A("v_mov_b32 v16, v9\ns_nop 3")
    A.stamp(5)
    for r in range(2):
        for c in range(2):
            for a_ in range(4):
                A(f"ds_write_b128 v{16+4*c+a_}, {vr(acc(r,c)+4*a_,4)} offset:{r*8192}")
    A("v_xor_b32 v5, 128, v10\nv_add_u32 v7, 65536, v10\nv_add_u32 v8, 65536, v5\ns_waitcnt vmcnt(0)")
    for n in range(4):
        A(f"v_lshlrev_b32 v{32+2*n}, 16, v{XB+n}\nv_and_b32 v{33+2*n}, 0xffff0000, v{XB+n}")
        A(f"v_lshlrev_b32 v{40+2*n}, 16, v{XB+4+n}\nv_and_b32 v{41+2*n}, 0xffff0000, v{XB+4+n}")
    for n in range(8): A(f"v_add_f32 v{32+n}, v{32+n}, v{40+n}")
    A("s_waitcnt lgkmcnt(0)\ns_barrier")
    A.stamp(6)
    R = 128
    for w in range(8):
        A(f"ds_read_b128 {vr(R+8*w,4)}, v{10 if w < 4 else 7} offset:{(w%4)*16384}")
        A(f"ds_read_b128 {vr(R+8*w+4,4)}, v{5 if w < 4 else 8} offset:{(w%4)*16384}")
    for w in range(8):
        A(f"s_waitcnt lgkmcnt({min(15,14-2*w)})")
        for n in range(8): A(f"v_add_f32 v{32+n}, v{32+n}, v{R+8*w+4*(n%2)+n//2}")
    for n in range(4): A(f"v_cvt_pk_bf16_f32 v{40+n}, v{32+2*n}, v{33+2*n}")
    A("buffer_store_dwordx4 v[40:43], v12, s[4:7], 0 offen")
    A.stamp_flush(2, 32)
    A("s_endpgm")

def gen_k2p(A, w2code):
    A.on = True
    AM = 32; PP = 64; B = [96, 112]; BP = 128; Z = 144; W = [176, 208]
    A(f"""
    v_and_b32 v2, 15, v0
    v_lshrrev_b32 v3, 4, v0
    v_lshlrev_b32 v4, 4, v0
    v_mul_u32_u24 v5, 57600, v3
    v_lshlrev_b32 v244, 15, v3
    v_lshl_add_u32 v244, v2, 4, v244
    v_lshrrev_b32 v245, 2, v2
    v_lshlrev_b32 v245, 9, v245
    v_and_b32 v8, 3, v2
    v_lshl_add_u32 v245, v8, 2, v245
    v_lshl_add_u32 v245, v3, 17, v245
    s_and_b32 s49, s32, 3
    s_lshr_b32 s38, s32, 2
    s_lshr_b32 s50, s48, 3
    s_lshl_b32 s50, s50, 2
    s_add_u32 s50, s50, s38
    s_lshl_b32 s50, s50, 3
    s_and_b32 s38, s48, 7
    s_add_u32 s50, s50, s38
    s_add_u32 s51, s50, 16
    """)
    for p in range(2):
        A(f"""
        s_lshr_b32 s33, s{50+p}, 3
        s_and_b32 s34, s{50+p}, 7
        s_lshl_b32 s35, s34, 2
        s_add_u32 s35, s35, s49
        s_lshl_b32 s36, s33, 5
        s_add_u32 s36, s36, s35
        s_lshl_b32 s36, s36, 12
        s_add_u32 s{52+p}, s36, {WS_X1}
        s_mul_i32 s37, s35, 450
        s_lshl_b32 s38, s33, 5
        s_add_u32 s37, s37, s38
        v_lshl_add_u32 v{6+p}, v2, 1, v5
        v_add_u32 v{6+p}, s37, v{6+p}
        s_lshl_b32 s38, s49, 19
        s_lshr_b32 s39, s33, 1
        s_lshl_b32 s39, s39, 12
        s_add_u32 s38, s38, s39
        s_lshl_b32 s39, s34, 9
        s_add_u32 s38, s38, s39
        s_and_b32 s39, s33, 1
        s_lshl_b32 s39, s39, 8
        s_add_u32 s38, s38, s39
        s_add_u32 s{54+p}, s38, {WS_U}
        """)
    LN = A.label("K2N")
    A(f"""
    s_mov_b32 s56, 0
    s_cmp_lt_u32 s51, 112
    s_cbranch_scc1 {LN}
    s_mov_b32 s56, 2
    s_cmp_lg_u32 s32, 0
    s_cbranch_scc1 {LN}
    s_mov_b32 s56, 1
    s_bfe_u32 s57, s48, 0x10002
    s_lshl_b32 s53, s57, 12
    s_add_u32 s53, s53, {WS_X1 + 14*131072}
    s_mul_i32 s37, s57, 7200
    s_add_u32 s37, s37, 448
    v_mul_u32_u24 v7, 450, v2
    v_add3_u32 v7, v7, v5, s37
    s_and_b32 s37, s48, 3
    v_lshrrev_b32 v8, 2, v2
    v_cmp_eq_u32 s[68:69], s37, v8
    v_bfrev_b32 v8, 1
    s_nop 0
    v_cndmask_b32 v7, v8, v7, s[68:69]
    s_lshl_b32 s38, s57, 11
    s_add_u32 s55, s38, {WS_U + 7*4096}
    {LN}:
    """)
    w2code()
    A.srd(12, 88, 921600); A.srd(16, 90, 921600)
    for r in range(0, 16, 4): A(f"v_mov_b32 v{B[1]+r}, 0")
    for p in range(2):
        LS = A.label("K2W")
        if p: A(f"s_cmp_eq_u32 s56, 2\ns_cbranch_scc1 {LS}\ns_waitcnt vmcnt(24)")
        else: A(f"v_mov_b32 v8, 1\ns_waitcnt vmcnt(0)\ns_barrier\ns_cmp_lg_u32 s32, 0\ns_cbranch_scc1 W2SIG\ns_mov_b64 exec, 1\nbuffer_store_byte v8, off, s[24:27], s46 sc1\ns_mov_b64 exec, -1\nW2SIG:"); A.stamp(1)
        for r in range(32): A(f"v_mov_b32 v{W[p]+r}, 0")
        for mt in range(0 if 'W' in os.environ.get('X', '') else 4):
            for j in range(4):
                A(f"s_mov_b32 s38, {14400*(16*mt+j)}")
                A(f"buffer_load_short_d16_hi v{W[p]+8*mt+j}, v{6+p}, s[12:15], s38 offen")
                A(f"buffer_load_short_d16_hi v{W[p]+8*mt+4+j}, v{6+p}, s[16:19], s38 offen")
        A(f"{LS}:")
    A(f"""
    v_cvt_f32_u32 v6, v2
    v_mul_f32 v6, {fhex(1/64)}, v6
    v_lshlrev_b32 v7, 2, v3
    v_cvt_f32_u32 v7, v7
    v_mul_f32 v7, v7, v6
    s_mov_b32 s40, 0x8000
    s_mov_b32 s41, 0x80000000
    """)
    for ks in range(4):
        for j in range(4): A(f"v_fmamk_f32 v{8+j}, v6, {fhex(float(16*ks+j))}, v7")
        for j in range(4): A(f"v_sin_f32 v{12+j}, v{8+j}")
        for j in range(4): A(f"v_cos_f32 v{8+j}, v{8+j}")
        A("s_nop 0")
        for j in range(4): A(f"v_cvt_pk_bf16_f32 v{AM+8*j+ks}, v{8+j}, v{12+j}\nv_cvt_pk_bf16_f32 v{AM+8*j+4+ks}, -v{12+j}, v{8+j}")
    LW = A.label("K2NP")
    A(f"""
    s_lshl_b32 s38, s49, 2
    v_add_u32 v8, s38, v3
    v_cmp_gt_u32 vcc, 14, v8
    v_lshlrev_b32 v9, 4, v2
    s_nop 0
    v_cndmask_b32 v8, 0, v8, vcc
    v_add_u32 v8, v8, v9
    v_lshlrev_b32 v8, 8, v8
    v_add_u32 v26, {WS_F}, v8
    v_lshlrev_b32 v6, 10, v3
    v_lshl_add_u32 v6, v2, 4, v6
    s_lshl_b32 s38, s49, 2
    s_lshr_b32 s39, s32, 2
    s_lshl_b32 s39, s39, 14
    s_add_u32 s38, s38, s39
    v_add_u32 v6, s38, v6
    s_lshl_b32 s38, s32, 12
    v_add_u32 v1, s38, v4
    v_lshlrev_b32 v28, 2, v0
    s_mov_b32 s58, {0 if DRY else 1}
    {'s_branch K2GO' if DRY else ''}
    K2REAL:
    """)
    A.stamp(2)
    A(f"s_cmp_gt_u32 s32, 3\ns_cbranch_scc1 {LW}")
    need_spare(A, 11, 10, 1); poll_issue(A, 9, 28, 24); poll_check(A, 9, 28, 11, 10, 0, 24)
    poll_issue(A, 9, 26); poll_check(A, 9, 26, 0, 0, 0)
    A(f"{LW}:\ns_barrier")
    A.stamp(3)
    def ldx():
        LX = A.label("K2X")
        for p in range(2):
            if p: A(f"s_cmp_eq_u32 s56, 2\ns_cbranch_scc1 {LX}")
            for ks in range(4): A(f"buffer_load_dwordx4 {vr(B[p]+4*ks,4)}, v4, s[20:23], s{52+p} offen offset:{ks*1024} sc1")
        A(f"{LX}:")
    ldx(); A("s_waitcnt vmcnt(0)")
    check(A, list(range(B[0], B[0]+32, 4)), 8, ldx)
    A("K2GO:")
    A.stamp(4)
    LB = A.label("K2BAR"); LSP = A.label("K2SP")
    for p in range(2):
        if p: A(f"s_cmp_eq_u32 s56, 2\ns_cbranch_scc1 {LB}")
        for j in range(4):
            for ks in range(4): A(f"v_mov_b32 v{BP+4*j+ks}, v{B[p]+4*ks+j}")
        def pk(op, d, a, b, c=None, neg=None):
            t = f"v_pk_{op}_f32 {vr(d,2)}, {vr(a,2)}, {vr(b,2)}" + (f", {vr(c,2)}" if c is not None else "")
            if neg: t += f" neg_lo:{neg} neg_hi:{neg}"
            A(t)
        def stage():
            A("s_nop 1")
            for j in (0, 2, 1, 3):
                for c in range(2): A(f"v_mfma_f32_16x16x32_bf16 {vr(PP+8*j+4*c,4)}, {vr(AM+8*j+4*c,4)}, {vr(BP+4*j,4)}, 0")
            A("s_nop 3")
            T = 8
            for e in range(0, 8, 2): pk("add", T+e, PP+e, PP+16+e); pk("add", T+8+e, PP+e, PP+16+e, neg="[0,1]")
            for e in range(0, 8, 2): pk("add", PP+e, PP+8+e, PP+24+e); pk("add", PP+16+e, PP+8+e, PP+24+e, neg="[0,1]")
            for e in range(0, 8, 2): pk("add", Z+e, T+e, PP+e); pk("add", Z+16+e, T+e, PP+e, neg="[0,1]")
            for e in range(0, 4, 2):
                pk("add", Z+8+e, T+8+e, PP+20+e); pk("add", Z+12+e, T+12+e, PP+16+e, neg="[0,1]")
                pk("add", Z+24+e, T+8+e, PP+20+e, neg="[0,1]"); pk("add", Z+28+e, T+12+e, PP+16+e)
        stage()
        for mt in range(4):
            zr = Z+8*mt; zi = zr+4; wr = W[p]+8*mt; wi = wr+4; t = 8 + 8*(mt % 2)
            for e in (0, 2): pk("mul", t+e, zr+e, wr+e); pk("mul", t+4+e, zr+e, wi+e)
            for e in (0, 2): pk("fma", t+e, zi+e, wi+e, t+e, neg="[1,0,0]"); pk("fma", t+4+e, zi+e, wr+e, t+4+e)
            for j in range(4): A(f"v_cvt_pk_bf16_f32 v{BP+4*j+mt}, v{t+j}, -v{t+4+j}")
        stage()
        if p: A(f"s_cmp_eq_u32 s56, 1\ns_cbranch_scc1 {LSP}")
        for mt in range(4):
            for j in range(4):
                A(f"v_cvt_pk_bf16_f32 v{8+j}, v{Z+8*mt+j}, -v{Z+8*mt+4+j}\nds_write_b32 v6, v{8+j} offset:{(16*mt+j)*256 + p*32768}")
    A(f"""
    s_branch {LB}
    {LSP}:
    s_cmp_eq_u32 s58, 0
    s_cbranch_scc1 {LB}
    s_mov_b64 exec, s[68:69]
    """)
    for mt in range(4):
        for j in range(4):
            A(f"v_cvt_pk_bf16_f32 v{8+4*mt+j}, v{Z+8*mt+j}, -v{Z+8*mt+4+j}\ns_add_u32 s39, s55, {(16*mt+j)*32768}\nbuffer_store_dword v{8+4*mt+j}, v245, s[20:23], s39 offen sc1")
    A(f"s_mov_b64 exec, -1\n{LB}:\ns_waitcnt lgkmcnt(0)\ns_barrier")
    A("s_add_u32 s58, s58, 1\ns_cmp_eq_u32 s58, 1\ns_cbranch_scc1 K2REAL")
    A.stamp(5)
    LE = A.label("K2E")
    for p in range(2):
        if p: A(f"s_cmp_ge_u32 s51, 112\ns_cbranch_scc1 {LE}")
        for n in range(4): A(f"ds_read_b128 {vr(AM+16*p+4*n,4)}, v1 offset:{n*1024 + p*32768}")
        for n in range(4):
            A(f"s_waitcnt lgkmcnt({3-n})\nbuffer_store_dwordx4 {vr(AM+16*p+4*n,4)}, v244, s[20:23], s{54+p} offen sc1\ns_add_u32 s{54+p}, s{54+p}, {4*32768}")
    A(f"{LE}:")
    A.stamp(6)
    A.stamp_flush(1, 32)
    A("s_endpgm")
```
